```python
import torch

def _softmax(x, axis=-1):
    return torch.softmax(x, dim=axis)

def _gelu(x):
    return torch.nn.functional.gelu(x, approximate='tanh')

def _silu(x):
    return torch.nn.functional.silu(x)

def _sigmoid(x):
    return torch.sigmoid(x)

def _layernorm(x, axis=-1, eps=1e-05):
    m = x.mean(dim=axis, keepdim=True)
    v = x.var(dim=axis, keepdim=True, unbiased=False)
    return (x - m) / torch.sqrt(v + eps)

def _scatter_add(tgt, idx, src, axis=0):
    return tgt.clone().index_add_(axis, idx, src)

def _segment_sum(src, seg, n):
    out = torch.zeros((n,) + src.shape[1:], dtype=src.dtype)
    return out.index_add_(0, seg, src)

def _pad(x, pw):
    flat = tuple((v for pair in reversed(pw) for v in pair))
    return torch.nn.functional.pad(x, flat)
kernel_name = 'adaLN_cond__spectral_gfnet__glu_gated_reglu__prompt'

def setup_inputs():

    _w = lambda a: (lambda t: t.to(torch.bfloat16) if t.is_floating_point() else t)(torch.as_tensor(a))

    def _A_setup():
        B, S, D = (1, 2048, 640)
        Df = D // 2 + 1
        return {'x': _w((lambda *s: torch.randn(*s, dtype=torch.bfloat16) * 0.05)(B, S, D)), 'w_r': _w((lambda *s: torch.randn(*s, dtype=torch.bfloat16) * 1.6)(S, Df) * 0.02), 'w_i': _w((lambda *s: torch.randn(*s, dtype=torch.bfloat16) * 1.6)(S, Df) * 0.02)}
    _A_in = _A_setup()

    def _B_setup():
        B, S, D, F = (1, 2048, 640, 1536)
        return {'x': _w((lambda *s: torch.randn(*s, dtype=torch.bfloat16) * 0.05)(B, S, D)), 'W_gate': _w((lambda *s: torch.randn(*s, dtype=torch.bfloat16) * 0.4)(D, F) * (2.0 / D) ** 0.5), 'W_up': _w((lambda *s: torch.randn(*s, dtype=torch.bfloat16) * 0.4)(D, F) * (2.0 / D) ** 0.5), 'W_down': _w((lambda *s: torch.randn(*s, dtype=torch.bfloat16) * 0.4)(F, D) * (1.0 / F) ** 0.5)}
    _B_in = _B_setup()
    return {'A_x': _A_in['x'], 'A_w_r': _A_in['w_r'], 'A_w_i': _A_in['w_i'], 'B_x': _B_in['x'], 'B_W_gate': _B_in['W_gate'], 'B_W_up': _B_in['W_up'], 'B_W_down': _B_in['W_down'], 'c': _w((lambda *s: torch.randn(*s, dtype=torch.bfloat16) * 0.2)(1, 640) * 8.0), 'w_mod': _w((lambda *s: torch.randn(*s, dtype=torch.bfloat16) * 0.2)(640, 6 * 640) * 640 ** (-0.5) * 8.0)}

def reference(A_x, A_w_r, A_w_i, B_x, B_W_gate, B_W_up, B_W_down, c, w_mod):

    def _A_ref(x, w_r, w_i):
        B, S, D = x.shape
        X = (lambda x, axes=(-2, -1): torch.fft.rfft2(x.float(), dim=axes))(x, axes=(-2, -1))
        W = w_r + 1j * w_i
        X = X * W
        y = (lambda x, s, axes=(-2, -1): torch.fft.irfft2(x, s=s, dim=axes).to(torch.bfloat16))(X, (S, D), axes=(-2, -1))
        return y

    def _B_ref(x, W_gate, W_up, W_down):
        gate = torch.einsum('bsd,df->bsf', x, W_gate)
        up = torch.einsum('bsd,df->bsf', x, W_up)
        gate = gate * (lambda x, dt: x.to(dt))(gate > 0, gate.dtype)
        h = gate * up
        return torch.einsum('bsf,fd->bsd', h, W_down)
    x = A_x
    mod = (_silu(c) @ w_mod).reshape(c.shape[0], 6, 1, -1)
    sa, ca, ga, sb, cb, gb = (mod[:, 0].clone(), mod[:, 1].clone(), mod[:, 2].clone(), mod[:, 3].clone(), mod[:, 4].clone(), mod[:, 5].clone())
    h = _layernorm(x, axis=-1) * (1 + ca) + sa
    x = x + ga * _A_ref(h, A_w_r, A_w_i)
    h = _layernorm(x, axis=-1) * (1 + cb) + sb
    x = x + gb * _B_ref(h, B_W_gate, B_W_up, B_W_down)
    return x
```

```python
import re

def _expand(tok):
    tok = tok.strip()
    neg = tok.startswith('-')
    if neg: tok = tok[1:]
    m = re.fullmatch(r'abs\((.*)\)', tok)
    if m: tok = m.group(1)
    m = re.fullmatch(r'\|(.*)\|', tok)
    if m: tok = m.group(1)
    m = re.fullmatch(r'([vas])(\d+)', tok)
    if m: return [(m.group(1), int(m.group(2)))]
    m = re.fullmatch(r'([vas])\[(\d+):(\d+)\]', tok)
    if m: return [(m.group(1), i) for i in range(int(m.group(2)), int(m.group(3)) + 1)]
    if tok in ('vcc', 'vcc_lo', 'vcc_hi'): return [('s', 'vcc')]
    if tok in ('exec', 'exec_lo', 'exec_hi'): return [('s', 'exec')]
    if tok == 'm0': return [('s', 'm0')]
    return []

TRANS = ('v_exp_f32', 'v_log_f32', 'v_rcp_f32', 'v_rsq_f32', 'v_sqrt_f32', 'v_sin_f32', 'v_cos_f32', 'v_rcp_iflag_f32')

class Ins:
    def __init__(self, text):
        self.text = text
        t = text.split(';')[0].strip()
        self.label = t.endswith(':')
        self.directive = t.startswith('.')
        self.op = ''
        self.w = set(); self.r = set()
        self.kind = 'other'
        self.dpp = False
        self.srcC = set(); self.srcAB = set()
        self.passes = 0
        self.wide_store_data = set()
        if self.label or self.directive or not t:
            self.kind = 'none'; return
        parts = t.split(None, 1)
        op = parts[0]; self.op = op
        rest = parts[1] if len(parts) > 1 else ''
        ops = [o.strip() for o in re.split(r',(?![^\[]*\])', rest)] if rest else []
        mods = ''
        if ops:
            last = ops[-1].split(None, 1)
            ops[-1] = last[0]
            mods = last[1] if len(last) > 1 else ''
        self.mods = mods
        E = lambda i: _expand(ops[i]) if i < len(ops) else []
        allr = lambda a: [x for i in range(a, len(ops)) for x in E(i)]
        base = re.sub(r'_(e32|e64|dpp|sdwa)$', '', op)
        if op.startswith('v_mfma'):
            self.kind = 'mfma'
            self.w = set(E(0)); self.srcAB = set(E(1) + E(2)); self.srcC = set(E(3)); self.r = self.srcAB | self.srcC
            self.passes = 8 if '32x32x16' in op else 4 if '16x16x32' in op else 16
        elif op.startswith('v_'):
            self.kind = 'valu'
            if 'row_' in mods or 'quad_perm' in mods or 'wave_' in mods or op.endswith('_dpp'): self.dpp = True
            if base.startswith('v_cmp'):
                self.w = set(E(0)); self.r = set(allr(1))
            elif base in ('v_swap_b32', 'v_permlane32_swap_b32', 'v_permlane16_swap_b32'):
                self.w = set(E(0) + E(1)); self.r = set(E(0) + E(1))
            elif base in ('v_add_co_u32', 'v_sub_co_u32', 'v_addc_co_u32', 'v_subb_co_u32', 'v_mad_u64_u32', 'v_div_scale_f32'):
                self.w = set(E(0) + E(1)); self.r = set(allr(2))
            else:
                self.w = set(E(0)); self.r = set(allr(1))
                if base in ('v_fmac_f32', 'v_pk_fmac_f16', 'v_dot2c_f32_bf16', 'v_writelane_b32') or self.dpp or 'op_sel' in mods and False:
                    self.r |= set(E(0))
                if base == 'v_cndmask_b32' and len(ops) == 3: self.r.add(('s', 'vcc'))
        elif op.startswith('buffer_') or op.startswith('global_'):
            self.kind = 'vmem'
            islds = re.search(r'\blds\b', mods) is not None or '_lds_' in op
            if islds:
                self.r = set(allr(0)) | {('s', 'm0')}; self.kind = 'vmem'; self.ldsdma = True
            elif 'store' in op or ('atomic' in op and 'sc0' not in mods):
                self.r = set(allr(0))
                if 'x3' in op or 'x4' in op:
                    self.wide_store_data = set(E(0) if op.startswith('buffer_') else E(1))
            else:
                self.w = set(E(0)); self.r = set(allr(1))
                if 'd16' in op or 'atomic' in op: self.r |= set(E(0))
        elif op.startswith('ds_'):
            self.kind = 'ds'
            if 'write' in op or op.startswith('ds_add') :
                self.r = set(allr(0))
            else:
                self.w = set(E(0)); self.r = set(allr(1))
        elif op.startswith('s_'):
            self.kind = 'salu'
            if op in ('s_nop', 's_waitcnt', 's_barrier', 's_endpgm', 's_branch', 's_setprio', 's_sleep') or op.startswith('s_cbranch'):
                pass
            elif op.startswith('s_cmp') or op.startswith('s_bitcmp'):
                self.r = set(allr(0))
            else:
                self.w = set(E(0)); self.r = set(allr(1))
                if 'saveexec' in op: self.w.add(('s', 'exec'))
        self.base = base
    def states(self):
        if self.kind == 'none': return 0
        if self.op == 's_nop': return int(self.text.split(';')[0].split()[1], 0) + 1
        return 1

def need(p, c):
    n = 0
    vw = {x for x in p.w if x[0] in 'va'}
    sw = {x for x in p.w if x[0] == 's'}
    if p.kind == 'valu':
        if c.kind == 'mfma' and vw & c.r: n = max(n, 2)
        if c.kind == 'valu':
            if c.dpp and vw & c.r: n = max(n, 2)
            if c.base.startswith('v_permlane') and vw & c.r: n = max(n, 2)
            if c.base in ('v_readlane_b32', 'v_readfirstlane_b32') and vw & c.r: n = max(n, 1)
            if p.base in TRANS and c.base not in TRANS and vw & c.r: n = max(n, 1)
            if p.base in TRANS and vw & c.r: n = max(n, 1)
            if sw & c.r:
                n = max(n, 4 if c.base in ('v_readlane_b32', 'v_writelane_b32', 'v_div_fmas_f32') else 2)
            if ('op_sel' in p.mods or 'sdwa' in p.op or 'dst_sel' in p.mods) and vw & (c.r | c.w): n = max(n, 1)
        if c.kind in ('vmem',) and sw & c.r: n = max(n, 5)
        if c.kind == 'salu' and sw & c.r: n = max(n, 1)
        if p.base in TRANS and c.kind in ('vmem', 'ds') and vw & c.r: n = max(n, 1)
    if p.kind == 'mfma':
        big = {4: 8, 8: 12, 16: 20}[p.passes]; mid = {4: 6, 8: 10, 16: 18}[p.passes]; war = {4: 3, 8: 7, 16: 15}[p.passes]
        if c.kind == 'mfma':
            if p.w & c.srcAB: n = max(n, big)
            if p.w & c.srcC:
                if not (p.w == c.srcC and p.passes == c.passes): n = max(n, mid)
            if p.w & c.w and not (p.w & c.srcC): n = max(n, mid)
        elif c.kind in ('valu', 'vmem', 'ds'):
            if p.w & (c.r | c.w): n = max(n, big)
            if c.kind == 'valu' and p.srcC & c.w: n = max(n, war)
            if c.kind in ('vmem', 'ds') and p.srcC & c.w: n = max(n, war)
    if p.kind == 'vmem' and p.wide_store_data:
        if p.wide_store_data & c.w: n = max(n, 2 if c.kind == 'valu' else 1)
    if p.kind == 'salu' and ('s', 'm0') in p.w and c.kind == 'vmem' and ('s', 'm0') in c.r: n = max(n, 1)
    return n

class Asm:
    def __init__(self):
        self.ins = []
    def __call__(self, text):
        for line in text.split('\n'):
            line = line.strip()
            if line: self.ins.append(Ins(line))
    def finalize(self):
        out = []
        for c in self.ins:
            if c.kind != 'none':
                dist = 0; pad = 0
                for p in reversed(out):
                    if dist >= 20: break
                    if p.kind == 'none': continue
                    n = need(p, c)
                    if n > dist: pad = max(pad, n - dist)
                    dist += p.states()
                while pad > 0:
                    k = min(pad, 16)
                    out.append(Ins(f's_nop {k-1}')); pad -= k
            out.append(c)
        return '\n'.join(('' if i.label or i.directive else '    ') + i.text for i in out) + '\n'

def vr(a, n=1, p='v'):
    return f'{p}{a}' if n == 1 else f'{p}[{a}:{a+n-1}]'
def ar(a, n=1): return vr(a, n, 'a')
def sr(a, n=1): return vr(a, n, 's')
```

```python
import numpy as np
def bf2f(u): return (u.astype(np.uint32) << 16).view(np.float32)
def f2bf(x):
    x = np.ascontiguousarray(x, dtype=np.float32); u = x.view(np.uint32)
    return ((u + 0x7FFF + ((u >> 16) & 1)) >> 16).astype(np.uint16)
def rb(x):
    if np.iscomplexobj(x): return rb(x.real) + 1j * rb(x.imag)
    return bf2f(f2bf(x)).astype(np.float64)
def rh(x):
    if np.iscomplexobj(x): return rh(x.real) + 1j * rh(x.imag)
    return x.astype(np.float16).astype(np.float64)
def w(N, e): return np.exp(-2j * np.pi * (np.asarray(e) % N) / N)

def sim(ref, R=rb, mimic=True, verbose=True):
    g = lambda k: bf2f(ref[k]).astype(np.float64)
    x = g('A_x').reshape(2048, 640); c = g('c').reshape(640)
    sc = rb(c / (1 + np.exp(-c)))
    mod = rb(sc @ g('w_mod')).reshape(6, 640)
    sa, ca, ga, sb, cb, gb = mod
    def ln(x, cs, sh):
        m = x.mean(-1, keepdims=True); v = x.var(-1, keepdims=True)
        if mimic:
            mm = rb(m); sd = rb(np.sqrt(rb(rb(v) + 1e-5)))
            return (x - mm) / sd * rb(1 + cs) + sh
        return (x - m) / np.sqrt(v + 1e-5) * rb(1 + cs) + sh
    h = R(ln(x, ca, sa))
    hh = h.reshape(8, 256, 640)
    z = hh[:4] + 1j * hh[4:]
    zz = z.reshape(4, 256, 32, 20)
    M32 = R(w(32, np.outer(np.arange(32), np.arange(32))))
    M20 = R(w(20, np.outer(np.arange(20), np.arange(20))))
    M16 = R(w(16, np.outer(np.arange(16), np.arange(16))))
    T = np.einsum('psba,bf->psaf', zz, M32)
    T = R(T * w(640, np.outer(np.arange(20), np.arange(32))))
    Z = R(np.einsum('psaf,ae->psef', T, M20)).reshape(4, 256, 640)
    f = np.arange(321)
    u = Z[:, :, f]; ww = Z[:, :, (640 - f) % 640]
    k0 = np.arange(8); sig = 1 - 2 * (k0 & 1)
    ph = k0[:, None, None] * (256 * np.arange(4)[None, :, None] + np.arange(256)[None, None, :]) / 2048.0
    al = R(np.exp(-2j * np.pi * (ph + sig[:, None, None] / 8.0)))
    be = R(np.exp(-2j * np.pi * (ph - sig[:, None, None] / 8.0)))
    V = R(np.einsum('kps,psf->ksf', al, u) + np.einsum('kps,psf->ksf', be, np.conj(ww)))
    Vv = V.reshape(8, 16, 16, 321)
    tw = w(256, np.outer(np.arange(16), np.arange(16)))
    A = R(np.einsum('kabf,ac->kbcf', Vv, M16) * tw[None, :, :, None])
    X = np.einsum('kbcf,be->kecf', A, M16)
    W = (g('A_w_r') + 1j * g('A_w_i')).reshape(16, 16, 8, 321).transpose(2, 0, 1, 3)
    sc2 = np.ones(321); sc2[0] = sc2[320] = 0.5
    X = R(X * W)
    B = R(np.einsum('kecf,eb->kcbf', X, np.conj(M16)) * np.conj(tw)[None, :, :, None] * sc2)
    Vp = R(np.einsum('kcbf,ca->kabf', B, np.conj(M16))).reshape(8, 256, 321)
    up = R(np.einsum('kps,ksf->psf', np.conj(al), Vp))
    wp = R(np.einsum('kps,ksf->psf', be, np.conj(Vp)))
    Zp = np.zeros((4, 256, 640), complex)
    Zp[:, :, f] = up
    Zp[:, :, 640 - f[1:320]] = wp[:, :, 1:320]
    Zp[:, :, 0] += wp[:, :, 0]; Zp[:, :, 320] += wp[:, :, 320]
    Zq = Zp.reshape(4, 256, 20, 32)
    T = np.einsum('psef,ea->psfa', Zq, np.conj(M20))
    T = R(T * np.conj(w(640, np.outer(np.arange(32), np.arange(20)))) / (2048 * 640))
    zo = np.einsum('psfa,fb->psba', T, np.conj(M32)).reshape(4, 256, 640)
    y = np.concatenate([zo.real, zo.imag], 0).reshape(2048, 640)
    yr = ref['y_f32'].reshape(2048, 640)
    if verbose: print('y rms', np.sqrt((yr**2).mean()), 'err rms', np.sqrt(((y - yr)**2).mean()), 'max', np.abs(y - yr).max())
    x1 = rb(x + ga * y)
    h2 = rb(ln(x1, cb, sb))
    gate = h2 @ g('B_W_gate'); upv = h2 @ g('B_W_up')
    H = rb(np.maximum(gate, 0) * upv)
    o = rb(x1 + gb * (H @ g('B_W_down')))
    ex = g('out').reshape(2048, 640); e64 = ref['out64'].reshape(2048, 640)
    if verbose:
        print('out vs ref: max', np.abs(o - ex).max(), 'rms', np.sqrt(((o - ex)**2).mean()), ' vs f64: max', np.abs(o - e64).max(), 'rms', np.sqrt(((o - e64)**2).mean()))
    return dict(mod=mod, h=h, Z=Z, V=V, Vp=Vp, y=y, x1=x1, h2=h2, H=H, o=o)

if __name__ == '__main__':
    ref = np.load('ref0.npz')
    print('exact, no mimic'); sim(ref, R=lambda x: x, mimic=False)
    print('exact, mimic'); sim(ref, R=lambda x: x, mimic=True)
    print('bf16, no mimic'); sim(ref, R=rb, mimic=False)
    print('bf16, mimic'); sim(ref, R=rb, mimic=True)
```

```python
import numpy as np
from sim import f2bf
def pk(lo, hi):
    return (f2bf(np.float32(lo)).astype(np.uint32) | (f2bf(np.float32(hi)).astype(np.uint32) << 16))
def f32(x): return np.asarray(x, dtype=np.float32).view(np.uint32)
L = np.arange(64); M32 = L & 31; H = L >> 5
def slot20(m):
    hp = (m >> 2) & 1; r = (m & 3) + 4 * (m >> 3)
    return np.where(r < 10, 10 * hp + r, -1)
def cs(num, den):
    a = 2 * np.pi * (np.asarray(num) % den) / den
    c = np.cos(a); s = np.sin(a)
    c[np.abs(c) < 1e-12] = 0; s[np.abs(s) < 1e-12] = 0
    return c, s
def quads(regs):
    r = np.array(regs, dtype=np.uint32)
    return r.reshape(-1, 4, 64).transpose(0, 2, 1).reshape(-1)

def tab_B1():
    re, im = [], []
    for j in range(4):
        for i in range(4):
            c, s = cs((8 * j + 4 * H + i) * M32, 32)
            re.append(pk(c, s)); im.append(pk(-s, c))
    return re + im
def tab_A2():
    re, im = [], []
    fa = slot20(M32)
    for j in range(3):
        for i in range(4):
            r = 4 * j + i
            c, s = cs((10 * H + r) * np.maximum(fa, 0), 20)
            z = (fa >= 0) & (r < 10)
            re.append(pk(c * z, s * z)); im.append(pk(-s * z, c * z))
    return re + im
def tab_tw1():
    tr, ti = [], []
    for r in range(10):
        c, s = cs((10 * H + r) * M32, 640)
        tr.append(f32(c)); ti.append(f32(-s))
    return tr + ti
def tab_a3c():
    m = M32 & 15
    k0 = 4 * ((m >> 2) & 1) + 2 * ((m >> 3) & 1) + ((m >> 1) & 1)
    part = m & 1; sig = 1 - 2 * (k0 & 1)
    off = np.where(H == 1, -sig, sig) / 8.0 + part / 4.0
    dhi = np.where(H == 1, 0.25, -0.25)
    return [f32(k0 / 2048.0), f32(off), f32(dhi), f32(k0 / 8.0)]
def tab_K2():
    c16 = L & 15; g = L >> 4
    re, im, tr, ti = [], [], [], []
    for i in range(4):
        c, s = cs((4 * g + i) * c16, 16)
        re.append(pk(c, s)); im.append(pk(-s, c))
        c, s = cs((4 * g + i) * c16, 256)
        tr.append(f32(c)); ti.append(f32(-s))
    return re + im + tr + ti
def tab_A():
    re, im = [], []
    da = slot20(M32)
    for j in range(3):
        for i in range(4):
            sl = 8 * j + 4 * H + i
            fa = np.where(sl < 20, sl, np.where(sl == 20, 0, 10))
            z = (da >= 0) & (sl < 22)
            c, s = cs(fa * np.maximum(da, 0), 20)
            re.append(pk(c * z, -s * z)); im.append(pk(s * z, c * z))
    return re + im
def tab_tw3():
    da = np.maximum(slot20(M32), 0)
    tr, ti = [], []
    for r in range(16):
        fb = 4 * H + (r & 3) + 8 * (r >> 2)
        c, s = cs(da * fb, 640)
        tr.append(f32(c / (2048 * 640))); ti.append(f32(s / (2048 * 640)))
    return tr + ti
def tab_a3c_inv():
    m = M32 & 15
    hh = (m >> 2) & 1; r = (m & 3) + 4 * (m >> 3); p = r >> 1; part = r & 1
    eps = np.where(hh == 0, 1.0, -1.0)
    return [f32(p / 8.0), f32(4.0 * H), f32(eps / 8.0), f32(-eps * part / 4.0)]

def build():
    parts = [('A2', tab_A2()), ('tw1', tab_tw1()), ('a3c', tab_a3c()), ('B1', tab_B1()), ('A', tab_A()), ('tw3', tab_tw3()), ('a3i', tab_a3c_inv()), ('K2', tab_K2())]
    off = {}; data = []; o = 0
    for n, regs in parts:
        q = quads(regs); off[n] = o; data.append(q); o += q.size * 4
    return np.concatenate(data), off
if __name__ == '__main__':
    d, o = build(); print(d.size * 4, o)
    for D, N, sh in ((80, 15360, 22), (3, 192, 10), (20, 160, 12), (5, 20, 8)):
        mg = -(-(1 << sh) // D)
        assert all((x * mg) >> sh == x // D for x in range(N)), D
        print(D, mg, sh)
```

```python
import sys
sys.path.insert(0, 'gen')
from asmlib import *
import tables

MOD, MOD_SZ = 0, 6 * 640 * 4
VV, VV_SZ = 0x100000, 321 * 8192
VPS = 10368
VP, VP_SZ = 0x400000, 256 * VPS + 4096
WW, WW_SZ = 0x700000, 321 * 8192
WGU, WGU_SZ = 0xA00000, 64 * 60 * 1024
WD, WD_SZ = 0xE00000, 8 * 240 * 1024
X1, X1_SZ = 0x1000000, 2048 * 1280
H2, H2_SZ = 0x1300000, 2048 * 1280
HH, HH_SZ = 0x1600000, 2048 * 3072
A_X, A_WR, A_WI, A_WG, A_WU, A_WD, A_C, A_WM, A_OUT, A_DBG, A_WS = 0, 8, 16, 32, 40, 48, 56, 64, 72, 80, 88
TAB, TOFF = tables.build()
TAB_SZ = TAB.size * 4

def srd(a, d, lo, size, off=0):
    if off:
        a(f's_add_u32 s{d}, s{lo}, {off}')
        a(f's_addc_u32 s{d+1}, s{lo+1}, 0')
    else:
        a(f's_mov_b32 s{d}, s{lo}')
        a(f's_mov_b32 s{d+1}, s{lo+1}')
    a(f's_mov_b32 s{d+2}, {size}')
    a(f's_mov_b32 s{d+3}, 0x20000')

def srd_tab(a, d, tag):
    a(f's_getpc_b64 s[{d}:{d+1}]')
    a(f'Lpc_{tag}:')
    a(f's_add_u32 s{d}, s{d}, tab_data-Lpc_{tag}')
    a(f's_addc_u32 s{d+1}, s{d+1}, 0')
    a(f's_mov_b32 s{d+2}, {TAB_SZ}')
    a(f's_mov_b32 s{d+3}, 0x20000')

def load_tab(a, dst, nregs, name, voff, srdr, stmp):
    n = nregs // 4
    base = TOFF[name]
    cur = None
    for i in range(n):
        o = base + i * 1024
        hi = o & ~4095
        if hi != cur:
            a(f's_mov_b32 s{stmp}, {hi}'); cur = hi
        a(f'buffer_load_dwordx4 {vr(dst+4*i,4)}, v{voff}, {sr(srdr,4)}, s{stmp} offen offset:{o-hi}')

def wave_reduce(a, regs, sdst):
    for m in ('quad_perm:[1,0,3,2] row_mask:0xf bank_mask:0xf', 'quad_perm:[2,3,0,1] row_mask:0xf bank_mask:0xf',
              'row_ror:4 row_mask:0xf bank_mask:0xf', 'row_ror:8 row_mask:0xf bank_mask:0xf',
              'row_bcast:15 row_mask:0xa bank_mask:0xf', 'row_bcast:31 row_mask:0xc bank_mask:0xf'):
        for r in regs:
            a(f'v_add_f32_dpp v{r}, v{r}, v{r} {m}')
    for i, r in enumerate(regs):
        a(f'v_readlane_b32 s{sdst+i}, v{r}, 63')

def ln_stats(a, fA, fB, t, st):
    a(f'v_readfirstlane_b32 s{st}, v{fA}')
    a(f'v_readfirstlane_b32 s{st+1}, v{fB}')
    for i in range(10):
        a(f'v_subrev_f32 v{fA+i}, s{st}, v{fA+i}')
        a(f'v_subrev_f32 v{fB+i}, s{st+1}, v{fB+i}')
    a(f'v_add_f32 v{t}, v{fA}, v{fA+1}')
    a(f'v_mul_f32 v{t+1}, v{fA}, v{fA}')
    a(f'v_add_f32 v{t+2}, v{fB}, v{fB+1}')
    a(f'v_mul_f32 v{t+3}, v{fB}, v{fB}')
    for i in range(1, 10):
        if i > 1: a(f'v_add_f32 v{t}, v{t}, v{fA+i}')
        a(f'v_fmac_f32 v{t+1}, v{fA+i}, v{fA+i}')
        if i > 1: a(f'v_add_f32 v{t+2}, v{t+2}, v{fB+i}')
        a(f'v_fmac_f32 v{t+3}, v{fB+i}, v{fB+i}')
    wave_reduce(a, [t, t+1, t+2, t+3], st + 2)
    a(f'v_mov_b32 v{t+4}, 0x3acccccd')
    a(f'v_mul_f32 v{t+5}, s{st+2}, v{t+4}')
    a(f'v_mul_f32 v{t+6}, s{st+4}, v{t+4}')
    a(f'v_mul_f32 v{t}, s{st+3}, v{t+4}')
    a(f'v_mul_f32 v{t+2}, s{st+5}, v{t+4}')
    a(f'v_fma_f32 v{t}, -v{t+5}, v{t+5}, v{t}')
    a(f'v_fma_f32 v{t+2}, -v{t+6}, v{t+6}, v{t+2}')
    a(f'v_max_f32 v{t}, 0, v{t}')
    a(f'v_max_f32 v{t+2}, 0, v{t+2}')
    a(f'v_add_f32 v{t}, 0x3727c5ac, v{t}')
    a(f'v_add_f32 v{t+2}, 0x3727c5ac, v{t+2}')
    a(f'v_rsq_f32 v{t}, v{t}')
    a(f'v_rsq_f32 v{t+2}, v{t+2}')
    a(f'v_mul_f32 v{t+1}, -v{t+5}, v{t}')
    a(f'v_mul_f32 v{t+3}, -v{t+6}, v{t+2}')

def unpack10(a, dst, src4, src1, smask):
    srcs = [src4, src4+1, src4+2, src4+3, src1]
    for i, s in enumerate(srcs):
        a(f'v_lshlrev_b32 v{dst+2*i}, 16, v{s}')
        a(f'v_and_b32 v{dst+2*i+1}, s{smask}, v{s}')

def load40(a, dst, voff, srdr, off):
    a(f'buffer_load_dwordx4 {vr(dst,4)}, v{voff}, {sr(srdr,4)}, 0 offen offset:{off}')
    a(f'buffer_load_dwordx4 {vr(dst+4,4)}, v{voff}, {sr(srdr,4)}, 0 offen offset:{off+16}')
    a(f'buffer_load_dwordx2 {vr(dst+8,2)}, v{voff}, {sr(srdr,4)}, 0 offen offset:{off+32}')

M32 = 'v_mfma_f32_32x32x16_bf16'
M16 = 'v_mfma_f32_16x16x32_bf16'

def k0():
    a = Asm()
    NMOD, NW, NGU, ND = 240, 321, 120, 60
    a(f's_cmp_ge_u32 s2, {NMOD+NW+NGU+ND}')
    a('s_cbranch_scc1 L0_end')
    a(f's_load_dwordx2 s[4:5], s[0:1], {A_WS}')
    a(f's_load_dwordx4 s[8:11], s[0:1], {A_WR}')
    a(f's_load_dwordx4 s[12:15], s[0:1], {A_WG}')
    a(f's_load_dwordx4 s[16:19], s[0:1], {A_WD}')
    a(f's_load_dwordx2 s[20:21], s[0:1], {A_WM}')
    a('v_and_b32 v1, 63, v0')
    a('v_lshrrev_b32 v2, 6, v0')
    a('v_readfirstlane_b32 s3, v2')
    a('s_mov_b32 s22, 0xffff0000')
    a(f's_cmp_ge_u32 s2, {NMOD}')
    a('s_cbranch_scc1 L0_w')
    a('s_and_b32 s23, s2, 7')
    a('s_mul_i32 s23, s23, 30')
    a('s_lshr_b32 s24, s2, 3')
    a('s_add_u32 s23, s23, s24')
    a('s_waitcnt lgkmcnt(0)')
    srd(a, 28, 20, 640 * 7680)
    srd(a, 32, 18, 1280)
    srd(a, 36, 4, MOD_SZ, MOD)
    a('v_lshrrev_b32 v3, 1, v0')
    a('v_and_b32 v4, 1, v0')
    a('v_mul_u32_u24 v5, 7680, v3')
    a('v_lshl_add_u32 v5, v4, 4, v5')
    a('v_lshlrev_b32 v6, 1, v3')
    a('s_lshl_b32 s24, s23, 5')
    for i in range(5):
        a(f'buffer_load_ushort v{8+i}, v6, s[32:35], 0 offen offset:{i*256}')
    for i in range(5):
        a(f'buffer_load_dwordx4 {vr(16+4*i,4)}, v5, s[28:31], s24 offen')
        if i < 4: a(f's_add_u32 s24, s24, {128*7680}')
    a('s_waitcnt vmcnt(5)')
    for i in range(5): a(f'v_lshlrev_b32 v{8+i}, 16, v{8+i}')
    for i in range(5): a(f'v_mul_f32 v{40+i}, 0xbfb8aa3b, v{8+i}')
    for i in range(5): a(f'v_exp_f32 v{40+i}, v{40+i}')
    for i in range(5): a(f'v_add_f32 v{40+i}, 1.0, v{40+i}')
    for i in range(5): a(f'v_rcp_f32 v{40+i}, v{40+i}')
    for i in range(5): a(f'v_mul_f32 v{8+i}, v{8+i}, v{40+i}')
    for i in range(5): a(f'v_cvt_pk_bf16_f32 v{8+i}, v{8+i}, v{8+i}')
    for i in range(5): a(f'v_and_b32 v{8+i}, s22, v{8+i}')
    for i in range(5):
        a(f's_waitcnt vmcnt({4-i})')
        for q in range(4):
            a(f'v_lshlrev_b32 v40, 16, v{16+4*i+q}')
            a(f'v_and_b32 v41, s22, v{16+4*i+q}')
            if i == 0:
                a(f'v_mul_f32 v{48+2*q}, v40, v8')
                a(f'v_mul_f32 v{49+2*q}, v41, v8')
            else:
                a(f'v_fmac_f32 v{48+2*q}, v40, v{8+i}')
                a(f'v_fmac_f32 v{49+2*q}, v41, v{8+i}')
    for m in ('quad_perm:[2,3,0,1]', 'row_ror:4', 'row_ror:8'):
        for q in range(8):
            a(f'v_add_f32_dpp v{48+q}, v{48+q}, v{48+q} {m} row_mask:0xf bank_mask:0xf')
    a('v_lshrrev_b32 v7, 4, v0')
    a('v_lshlrev_b32 v7, 6, v7')
    a('v_lshl_add_u32 v7, v4, 5, v7')
    a('v_and_b32 v13, 14, v0')
    a('v_cmp_eq_u32 vcc, 0, v13')
    a('s_and_saveexec_b64 s[26:27], vcc')
    a('ds_write_b128 v7, v[48:51]')
    a('ds_write_b128 v7, v[52:55] offset:16')
    a('s_mov_b64 exec, s[26:27]')
    a('s_waitcnt lgkmcnt(0)')
    a('s_barrier')
    a('s_cmp_lg_u32 s3, 0')
    a('s_cbranch_scc1 L0_end')
    a('v_and_b32 v13, 15, v0')
    a('v_lshlrev_b32 v7, 2, v13')
    for i in range(16): a(f'ds_read_b32 v{16+i}, v7 offset:{i*64}')
    a('s_mul_i32 s24, s23, 1639')
    a('s_lshr_b32 s24, s24, 16')
    a('s_cmp_eq_u32 s24, 1')
    a('s_cselect_b32 s25, 1.0, 0')
    a('s_cmp_eq_u32 s24, 4')
    a('s_cselect_b32 s25, 1.0, s25')
    a('s_lshl_b32 s24, s23, 6')
    a('s_waitcnt lgkmcnt(0)')
    for st in (8, 4, 2, 1):
        for i in range(st): a(f'v_add_f32 v{16+i}, v{16+i}, v{16+i+st}')
    a('v_cvt_pk_bf16_f32 v16, v16, v16')
    a('v_and_b32 v16, s22, v16')
    a('v_add_f32 v16, s25, v16')
    a('v_cvt_pk_bf16_f32 v16, v16, v16')
    a('v_and_b32 v16, s22, v16')
    a('v_cmp_gt_u32 vcc, 16, v1')
    a('s_and_saveexec_b64 s[26:27], vcc')
    a('buffer_store_dword v16, v7, s[36:39], s24 offen')
    a('s_endpgm')
    a('L0_w:')
    a(f's_cmp_ge_u32 s2, {NMOD+NW}')
    a('s_cbranch_scc1 L0_gu')
    a(f's_sub_u32 s23, s2, {NMOD}')
    a('s_waitcnt lgkmcnt(0)')
    srd(a, 28, 8, 2048 * 642)
    srd(a, 32, 10, 2048 * 642)
    srd(a, 36, 4, WW_SZ, WW)
    a('s_and_b32 s24, s23, 63')
    a('s_lshl_b32 s24, s24, 3')
    a('s_lshl_b32 s25, s3, 1')
    a('s_add_u32 s24, s24, s25')
    a('v_mov_b32 v3, s24')
    a('s_andn2_b32 s24, s23, 63')
    a('v_add_u32 v4, s24, v1')
    a('s_cmp_lt_u32 s23, 320')
    a('s_cbranch_scc1 L0_w1')
    a('v_lshlrev_b32 v3, 1, v0')
    a('v_mov_b32 v4, 320')
    a('L0_w1:')
    a('v_lshrrev_b32 v5, 6, v3')
    a('v_bfe_u32 v6, v3, 4, 2')
    a('v_lshl_add_u32 v5, v6, 9, v5')
    a('v_and_b32 v6, 15, v3')
    a('v_lshl_add_u32 v5, v6, 3, v5')
    a('v_mul_u32_u24 v5, 642, v5')
    a('v_lshl_add_u32 v5, v4, 1, v5')
    a('v_add_u32 v6, 5136, v5')
    a('v_lshlrev_b32 v7, 13, v4')
    a('v_lshl_add_u32 v7, v3, 4, v7')
    for r in range(1, 4): a(f's_mov_b32 s{40+r}, {r*82176}')
    for e in range(2):
        for r in range(4):
            so = '0' if r == 0 else f's{40+r}'
            a(f'buffer_load_ushort v{8+8*e+r}, v{5+e}, s[28:31], {so} offen')
            a(f'buffer_load_ushort v{12+8*e+r}, v{5+e}, s[32:35], {so} offen')
    for e in range(2):
        a(f's_waitcnt vmcnt({8-8*e})' if e == 0 else 's_waitcnt vmcnt(1)')
        for r in range(4):
            a(f'v_lshl_or_b32 v{8+8*e+r}, v{12+8*e+r}, 16, v{8+8*e+r}')
        a(f'buffer_store_dwordx4 {vr(8+8*e,4)}, v7, s[36:39], 0 offen offset:{16*e}')
    a('s_endpgm')
    def transpose8(a, src, dst):
        for i in range(8):
            for pp in range(4):
                a(f'v_perm_b32 v{dst+4*i+pp}, v{src+4*(2*pp+1)+(i>>1)}, v{src+4*(2*pp)+(i>>1)}, s{50+(i&1)}')
    a('L0_gu:')
    a('s_mov_b32 s50, 0x05040100')
    a('s_mov_b32 s51, 0x07060302')
    a(f's_cmp_ge_u32 s2, {NMOD+NW+NGU}')
    a('s_cbranch_scc1 L0_d')
    a(f's_sub_u32 s23, s2, {NMOD+NW}')
    a('s_lshl_b32 s23, s23, 2')
    a('s_add_u32 s23, s23, s3')
    a('s_waitcnt lgkmcnt(0)')
    a('s_cmp_ge_u32 s23, 240')
    a('s_cselect_b32 s24, 1, 0')
    a('s_cselect_b32 s28, s14, s12')
    a('s_cselect_b32 s29, s15, s13')
    a('s_cselect_b32 s25, 240, 0')
    a(f's_mov_b32 s30, {640*3072}')
    a('s_mov_b32 s31, 0x20000')
    srd(a, 36, 4, WGU_SZ, WGU)
    a('s_sub_u32 s23, s23, s25')
    a('s_mul_i32 s25, s23, 342')
    a('s_lshr_b32 s25, s25, 10')
    a('s_mul_i32 s26, s25, 3')
    a('s_sub_u32 s26, s23, s26')
    a('s_mul_i32 s40, s25, 10')
    a('s_mul_i32 s41, s25, 40')
    a(f's_sub_u32 s41, s41, {64*40-8}')
    a('s_cmp_lt_u32 s25, 64')
    a('s_cselect_b32 s40, s40, s41')
    a('s_cselect_b32 s41, 2, 10')
    a('s_mul_i32 s41, s41, 3072')
    a('s_mul_i32 s40, s40, 3072')
    a('s_lshl_b32 s42, s26, 10')
    a('s_add_u32 s40, s40, s42')
    a('v_lshlrev_b32 v3, 4, v1')
    for e2 in range(4):
        a(f'buffer_load_dwordx4 {vr(8+8*e2,4)}, v3, s[28:31], s40 offen')
        a(f'buffer_load_dwordx4 {vr(12+8*e2,4)}, v3, s[28:31], s40 offen offset:3072')
        if e2 < 3: a('s_add_u32 s40, s40, s41')
    a('s_lshl_b32 s42, s26, 6')
    a('v_add_u32 v4, s42, v1')
    a('v_mul_u32_u24 v5, 342, v4')
    a('v_lshrrev_b32 v5, 10, v5')
    a('v_mul_u32_u24 v6, 3, v5')
    a('v_sub_u32 v6, v4, v6')
    a('v_mul_u32_u24 v5, 61440, v5')
    a('s_lshr_b32 s42, s25, 2')
    a('s_mul_i32 s42, s42, 3072')
    a('s_and_b32 s43, s25, 3')
    a('s_lshl_b32 s43, s43, 8')
    a('s_add_u32 s42, s42, s43')
    a('s_lshl_b32 s43, s24, 10')
    a('v_lshl_add_u32 v7, v6, 7, s43')
    a('s_lshl_b32 s43, s24, 5')
    a('s_add_u32 s43, s43, 2048')
    a('v_mov_b32 v72, s43')
    a('v_cmp_gt_u32 vcc, 2, v6')
    a('v_cndmask_b32 v7, v72, v7, vcc')
    a('v_add_u32 v72, v5, v7')
    a('v_mov_b32 v7, 64')
    a('v_cndmask_b32 v7, v7, 32, vcc')
    a('v_add_u32 v73, v72, v7')
    a('v_add_u32 v74, v73, v7')
    a('v_add_u32 v75, v74, v7')
    a('s_waitcnt vmcnt(0)')
    transpose8(a, 8, 40)
    for i in range(8):
        a(f'buffer_store_dwordx4 {vr(40+4*i,4)}, v{72+(i>>1)}, s[36:39], s42 offen offset:{16*(i&1)}')
    a('s_endpgm')
    a('L0_d:')
    a(f's_sub_u32 s23, s2, {NMOD+NW+NGU}')
    a('s_lshl_b32 s23, s23, 8')
    a('s_waitcnt lgkmcnt(0)')
    srd(a, 28, 16, 1536 * 1280)
    srd(a, 36, 4, WD_SZ, WD)
    a('v_add_u32 v3, s23, v0')
    a('v_mul_u32_u24 v4, 52429, v3')
    a('v_lshrrev_b32 v4, 22, v4')
    a('v_mul_u32_u24 v5, 80, v4')
    a('v_sub_u32 v5, v3, v5')
    a('v_mul_u32_u24 v6, 10240, v4')
    a('v_lshl_add_u32 v6, v5, 4, v6')
    a('s_mov_b32 s40, 5120')
    for e in range(8):
        so = '0' if e < 4 else 's40'
        a(f'buffer_load_dwordx4 {vr(8+4*e,4)}, v6, s[28:31], {so} offen offset:{(e&3)*1280}')
    a('v_lshrrev_b32 v7, 2, v4')
    a('v_mul_u32_u24 v7, 5120, v7')
    a('v_and_b32 v6, 3, v4')
    a('v_lshl_add_u32 v7, v6, 8, v7')
    for hq in range(2):
        a(f'v_lshl_add_u32 v76, v5, 1, {hq}')
        a('v_mul_u32_u24 v77, 205, v76')
        a('v_lshrrev_b32 v77, 12, v77')
        a('v_mul_u32_u24 v78, 20, v77')
        a('v_sub_u32 v76, v76, v78')
        a('v_mul_u32_u24 v78, 52, v76')
        a('v_lshrrev_b32 v78, 8, v78')
        a('v_mul_u32_u24 v79, 5, v78')
        a('v_sub_u32 v76, v76, v79')
        a('v_mul_u32_u24 v77, 245760, v77')
        a('v_lshl_add_u32 v77, v76, 10, v77')
        a('v_lshl_add_u32 v77, v78, 6, v77')
        a(f'v_add_u32 v{72+hq}, v77, v7')
    a('s_waitcnt vmcnt(0)')
    transpose8(a, 8, 40)
    for i in range(8):
        a(f'buffer_store_dwordx4 {vr(40+4*i,4)}, v{72+(i>>2)}, s[36:39], 0 offen offset:{16*(i&3)}')
    a('L0_end:')
    a('s_endpgm')
    return dict(name='k0_kernel', code=a.finalize(), grid=NMOD+NW+NGU+ND, block=256, lds=1024, vgpr=80, agpr=0)

def k1():
    a = Asm()
    XA, XB, CA, SA, B1, A2, TW, A3C, A3, FA, FB, FR, AR, AI, PK, T = 4, 10, 16, 26, 36, 68, 92, 112, 116, 120, 130, 140, 160, 176, 192, 204
    T2 = 4 * 2880
    a('s_cmp_ge_u32 s2, 256')
    a('s_cbranch_scc1 L1_end')
    a(f's_load_dwordx2 s[4:5], s[0:1], {A_WS}')
    a(f's_load_dwordx2 s[6:7], s[0:1], {A_X}')
    srd_tab(a, 20, 'k1')
    a('v_and_b32 v1, 63, v0')
    a('v_lshrrev_b32 v2, 6, v0')
    a('v_readfirstlane_b32 s3, v2')
    a('s_and_b32 s24, s2, 7')
    a('s_lshl_b32 s24, s24, 5')
    a('s_lshr_b32 s25, s2, 3')
    a('s_add_u32 s24, s24, s25')
    a('s_lshl_b32 s25, s3, 8')
    a('s_add_u32 s25, s25, s24')
    a('s_mul_i32 s25, s25, 1280')
    a(f's_add_u32 s26, s25, {1024*1280}')
    a('v_mul_u32_u24 v2, 20, v1')
    a('v_lshlrev_b32 v3, 1, v2')
    a('v_lshlrev_b32 v9, 4, v1')
    a('s_mov_b32 s27, 0xffff0000')
    a('s_waitcnt lgkmcnt(0)')
    srd(a, 8, 6, 2048 * 1280)
    srd(a, 12, 4, MOD_SZ, MOD)
    srd(a, 16, 4, VV_SZ, VV)
    a(f'buffer_load_dwordx4 {vr(XA,4)}, v2, s[8:11], s25 offen')
    a(f'buffer_load_dword v{XA+4}, v2, s[8:11], s25 offen offset:16')
    a(f'buffer_load_dwordx4 {vr(XB,4)}, v2, s[8:11], s26 offen')
    a(f'buffer_load_dword v{XB+4}, v2, s[8:11], s26 offen offset:16')
    load40(a, CA, 3, 12, 2560)
    load40(a, SA, 3, 12, 0)
    load_tab(a, A3C, 4, 'a3c', 9, 20, 28)
    load_tab(a, B1, 32, 'B1', 9, 20, 28)
    load_tab(a, TW, 20, 'tw1', 9, 20, 28)
    load_tab(a, A2, 24, 'A2', 9, 20, 28)
    a('v_and_b32 v15, 1, v1')
    a('v_mul_u32_u24 v15, 1440, v15')
    a('v_lshrrev_b32 v2, 1, v1')
    a('v_lshl_add_u32 v15, v2, 2, v15')
    a('s_mul_i32 s29, s3, 2880')
    a('v_add_u32 v15, s29, v15')
    a('v_and_b32 v2, 3, v1')
    a('v_bfe_u32 v3, v1, 3, 2')
    a('v_lshl_add_u32 v2, v3, 2, v2')
    a('v_min_u32 v2, 9, v2')
    a('v_bfe_u32 v3, v1, 2, 1')
    a('v_mul_u32_u24 v3, 10, v3')
    a('v_add_u32 v2, v2, v3')
    a('v_mul_u32_u24 v2, 144, v2')
    a('v_lshrrev_b32 v3, 5, v1')
    a('v_lshl_add_u32 v2, v3, 4, v2')
    a('v_add_u32 v156, s29, v2')
    a('v_and_b32 v2, 31, v1')
    a('v_mul_u32_u24 v157, 5120, v3')
    a('v_lshl_add_u32 v157, v2, 4, v157')
    a('s_lshl_b32 s29, s3, 2')
    a(f's_add_u32 s29, s29, {T2}')
    a('v_add_u32 v157, s29, v157')
    a('s_lshl_b32 s29, s3, 5')
    a('v_cmp_eq_u32 vcc, 0, v3')
    for i in range(3):
        a(f'v_add_u32 v158, s29, v2')
        if i: a(f'v_add_u32 v158, {128*i}, v158')
        a('v_sub_u32 v159, 640, v158')
        if i == 0:
            a('v_cmp_ne_u32 s[30:31], 0, v158')
            a('v_cndmask_b32 v159, 0, v159, s[30:31]')
        a('v_cndmask_b32 v159, v159, v158, vcc')
        a(f'v_lshlrev_b32 v{212+i}, 4, v159')
        a(f'v_add_u32 v{212+i}, {T2}, v{212+i}')
        a(f'v_lshlrev_b32 v{215+i}, 13, v158')
        a(f'v_lshl_add_u32 v{215+i}, v3, 12, v{215+i}')
    a('s_bfe_u32 s29, s24, 0x20004')
    a('s_lshl_b32 s29, s29, 10')
    a('s_lshr_b32 s30, s24, 6')
    a('s_lshl_b32 s30, s30, 8')
    a('s_add_u32 s29, s29, s30')
    a('s_and_b32 s30, s24, 15')
    a('s_lshl_b32 s30, s30, 4')
    a('s_add_u32 s29, s29, s30')
    a(f'v_mov_b32 v{PK+10}, 0')
    a(f'v_mov_b32 v{PK+11}, 0')
    a('s_waitcnt vmcnt(26)')
    unpack10(a, FA, XA, XA+4, 27)
    unpack10(a, FB, XB, XB+4, 27)
    ln_stats(a, FA, FB, T, 32)
    a('s_waitcnt vmcnt(19)')
    for i in range(10):
        a(f'v_fma_f32 v{FA+i}, v{FA+i}, v{T}, v{T+1}')
        a(f'v_fma_f32 v{FB+i}, v{FB+i}, v{T+2}, v{T+3}')
        a(f'v_fma_f32 v{FA+i}, v{FA+i}, v{CA+i}, v{SA+i}')
        a(f'v_fma_f32 v{FB+i}, v{FB+i}, v{CA+i}, v{SA+i}')
        a(f'v_cvt_pk_bf16_f32 v{FA+i}, v{FA+i}, v{FB+i}')
        a(f'ds_write_b32 v15, v{FA+i} offset:{144*i}')
    a('v_cvt_f32_u32 v158, s24')
    a(f'v_fma_f32 v158, v{A3C}, v158, v{A3C+1}')
    a('s_waitcnt lgkmcnt(0)')
    for j in range(4):
        a(f'ds_read_b128 {vr(FR+4*j,4)}, v156 offset:{32*j}')
    for p in range(4):
        a(f'v_add_f32 v159, v158, v{A3C+2}')
        a(f'v_cos_f32 v{T+4}, v158')
        a(f'v_cos_f32 v159, v159')
        if p < 3: a(f'v_add_f32 v158, v158, v{A3C+3}')
        a(f'v_cvt_pk_bf16_f32 v{A3+p}, v{T+4}, v159')
    a('s_waitcnt vmcnt(11)')
    for j in range(4):
        a(f's_waitcnt lgkmcnt({3-j})')
        a(f'{M32} {vr(AR,16)}, {vr(FR+4*j,4)}, {vr(B1+4*j,4)}, {"0" if j==0 else vr(AR,16)}')
        a(f'{M32} {vr(AI,16)}, {vr(FR+4*j,4)}, {vr(B1+16+4*j,4)}, {"0" if j==0 else vr(AI,16)}')
    a('s_waitcnt vmcnt(6)')
    for r in range(10):
        a(f'v_mul_f32 v{FA+r}, v{AR+r}, v{TW+r}')
        a(f'v_mul_f32 v{FB+r}, v{AR+r}, v{TW+10+r}')
    for r in range(10):
        a(f'v_fma_f32 v{FA+r}, -v{AI+r}, v{TW+10+r}, v{FA+r}')
        a(f'v_fmac_f32 v{FB+r}, v{AI+r}, v{TW+r}')
        a(f'v_cvt_pk_bf16_f32 v{PK+r}, v{FA+r}, v{FB+r}')
    a('s_waitcnt vmcnt(0)')
    for j in range(3):
        a(f'{M32} {vr(AR,16)}, {vr(A2+4*j,4)}, {vr(PK+4*j,4)}, {"0" if j==0 else vr(AR,16)}')
        a(f'{M32} {vr(AI,16)}, {vr(A2+12+4*j,4)}, {vr(PK+4*j,4)}, {"0" if j==0 else vr(AI,16)}')
    for r in range(10):
        a(f'v_cvt_pk_bf16_f32 v{FA+r}, v{AR+r}, v{AI+r}')
        a(f'ds_write_b32 v157, v{FA+r} offset:{512*r}')
    a('s_waitcnt lgkmcnt(0)')
    a('s_barrier')
    for i in range(3):
        a(f'ds_read_b128 {vr(FR+4*i,4)}, v{212+i}')
    accs = [AR, AI, 36]
    for i in range(3):
        a(f's_waitcnt lgkmcnt({2-i})')
        a(f'{M32} {vr(accs[i],16)}, {vr(A3,4)}, {vr(FR+4*i,4)}, 0')
    for i in range(3):
        for q in range(4):
            a(f'v_cvt_pk_bf16_f32 v{PK+4*i+q}, v{accs[i]+2*q}, v{accs[i]+2*q+1}')
        a(f'buffer_store_dwordx4 {vr(PK+4*i,4)}, v{215+i}, s[16:19], s29 offen')
    a('L1_end:')
    a('s_endpgm')
    return dict(name='k1_kernel', code=a.finalize(), grid=256, block=256, lds=T2 + 10240, vgpr=220, agpr=0)

def k2():
    a = Asm()
    D, W, MR, MI, TR, TI = 4, 12, 20, 24, 28, 32
    RE, IM, T, P = 36, 44, 52, 68
    a('s_cmp_ge_u32 s2, 321')
    a('s_cbranch_scc1 L2_end')
    a(f's_load_dwordx2 s[4:5], s[0:1], {A_WS}')
    srd_tab(a, 20, 'k2')
    a('v_and_b32 v1, 63, v0')
    a('v_lshrrev_b32 v2, 6, v0')
    a('v_readfirstlane_b32 s3, v2')
    a('v_lshlrev_b32 v2, 4, v1')
    load_tab(a, MR, 16, 'K2', 2, 20, 28)
    a('s_and_b32 s24, s2, 7')
    a('s_mul_i32 s24, s24, 40')
    a('s_lshr_b32 s25, s2, 3')
    a('s_add_u32 s24, s24, s25')
    a('s_cmp_eq_u32 s2, 320')
    a('s_cselect_b32 s24, 320, s24')
    a('s_cselect_b32 s30, 0x3f3504f3, 1.0')
    a('s_cmp_eq_u32 s24, 0')
    a('s_cselect_b32 s30, 0x3f3504f3, s30')
    a('s_lshl_b32 s25, s24, 13')
    a('s_lshr_b32 s26, s3, 1')
    a('s_and_b32 s27, s3, 1')
    a('s_lshl_b32 s29, s26, 12')
    a('s_add_u32 s29, s29, s25')
    a('s_lshl_b32 s31, s27, 3')
    a('s_add_u32 s29, s29, s31')
    a('s_lshl_b32 s31, s3, 11')
    a('s_add_u32 s25, s25, s31')
    a('s_waitcnt lgkmcnt(0)')
    srd(a, 8, 4, VV_SZ, VV)
    srd(a, 12, 4, WW_SZ, WW)
    srd(a, 16, 4, VP_SZ, VP)
    for pr, i in enumerate((0, 2, 1, 3)):
        a(f'buffer_load_dwordx2 {vr(D+2*pr,2)}, v2, s[8:11], s29 offen offset:{1024*i}')
    a(f'buffer_load_dwordx4 {vr(W,4)}, v2, s[12:15], s25 offen')
    a(f'buffer_load_dwordx4 {vr(W+4,4)}, v2, s[12:15], s25 offen offset:1024')
    a('v_lshrrev_b32 v3, 4, v1')
    a('v_lshlrev_b32 v3, 6, v3')
    a('v_and_b32 v76, 15, v1')
    a('v_add_u32 v3, v3, v76')
    a(f'v_mul_u32_u24 v3, {VPS}, v3')
    a('s_lshl_b32 s32, s24, 5')
    a('s_lshl_b32 s31, s3, 3')
    a('s_add_u32 s32, s32, s31')
    for r in range(1, 4): a(f's_add_u32 s{32+r}, s32, {r*16*VPS}')
    a('s_mov_b32 s27, 0xffff0000')
    a('s_waitcnt vmcnt(6)')
    for i in range(8): a(f'v_mul_f32 v{TR+i}, s30, v{TR+i}')
    a('s_waitcnt vmcnt(2)')
    a(f'v_swap_b32 v{D+1}, v{D+4}')
    a(f'v_swap_b32 v{D+3}, v{D+6}')
    def mm(dataA, src, outX, outY):
        for jb in range(2):
            d = vr(src + 4*jb, 4)
            for out, m in ((outX, MR), (outY, MI)):
                o = vr(out + 4*jb, 4)
                a(f'{M16} {o}, {d}, {vr(m,4)}, 0' if dataA else f'{M16} {o}, {vr(m,4)}, {d}, 0')
    def cmul(cr, ci, conj, swap):
        for jb in range(2):
            for r in range(4):
                k = 4*jb + r
                a(f'v_mul_f32 v{T+k}, v{RE+k}, v{cr(jb,r)}')
                a(f'v_mul_f32 v{T+8+k}, v{IM+k}, v{cr(jb,r)}')
            for r in range(4):
                k = 4*jb + r
                a(f'v_fma_f32 v{T+k}, {"" if conj else "-"}v{IM+k}, v{ci(jb,r)}, v{T+k}')
                a(f'v_fma_f32 v{T+8+k}, {"-" if conj else ""}v{RE+k}, v{ci(jb,r)}, v{T+8+k}')
                if swap: a(f'v_cvt_pk_bf16_f32 v{P+k}, v{T+8+k}, v{T+k}')
                else: a(f'v_cvt_pk_bf16_f32 v{P+k}, v{T+k}, v{T+8+k}')
    mm(True, D, RE, IM)
    a('s_waitcnt vmcnt(0)')
    for k in range(8):
        a(f'v_lshlrev_b32 v{76+k}, 16, v{W+k}')
        a(f'v_and_b32 v{W+k}, s27, v{W+k}')
    cmul(lambda j, r: TR+r, lambda j, r: TI+r, False, False)
    mm(False, P, RE, IM)
    cmul(lambda j, r: 76+4*j+r, lambda j, r: W+4*j+r, False, True)
    mm(True, P, IM, RE)
    cmul(lambda j, r: TR+r, lambda j, r: TI+r, True, True)
    mm(False, P, IM, RE)
    for r in range(4):
        a(f'v_cvt_pk_bf16_f32 v{T+2*r}, v{RE+r}, v{IM+r}')
        a(f'v_cvt_pk_bf16_f32 v{T+2*r+1}, v{RE+4+r}, v{IM+4+r}')
        a(f'buffer_store_dwordx2 {vr(T+2*r,2)}, v3, s[16:19], s{32+r} offen')
    a('L2_end:')
    a('s_endpgm')
    return dict(name='k2_kernel', code=a.finalize(), grid=321, block=256, lds=0, vgpr=84, agpr=0)

def k3():
    a = Asm()
    XA, XB, GA, CB, SB, B1, MA, TW, A3C, A3 = 4, 10, 16, 26, 36, 48, 80, 104, 136, 140
    DV, AR, AI, A3X, PK, FA, FB, T = 144, 160, 176, 192, 208, 224, 234, 244
    a('s_cmp_ge_u32 s2, 256')
    a('s_cbranch_scc1 L3_end')
    a(f's_load_dwordx2 s[4:5], s[0:1], {A_WS}')
    a(f's_load_dwordx2 s[6:7], s[0:1], {A_X}')
    srd_tab(a, 20, 'k3')
    a('v_and_b32 v1, 63, v0')
    a('v_lshrrev_b32 v2, 6, v0')
    a('v_readfirstlane_b32 s3, v2')
    a('v_lshlrev_b32 v9, 4, v1')
    load_tab(a, A3C, 4, 'a3i', 9, 20, 28)
    a('s_and_b32 s24, s2, 7')
    a('s_lshl_b32 s24, s24, 5')
    a('s_lshr_b32 s25, s2, 3')
    a('s_add_u32 s24, s24, s25')
    a('s_lshl_b32 s25, s3, 8')
    a('s_add_u32 s25, s25, s24')
    a('s_mul_i32 s25, s25, 1280')
    a(f's_add_u32 s26, s25, {1024*1280}')
    a('v_and_b32 v2, 31, v1')
    a('v_lshrrev_b32 v3, 5, v1')
    a('v_lshlrev_b32 v15, 5, v2')
    a('v_lshl_add_u32 v15, v3, 4, v15')
    a(f's_mul_i32 s29, s24, {VPS}')
    a('s_lshl_b32 s30, s3, 10')
    a('s_add_u32 s29, s29, s30')
    a('s_add_u32 s30, s29, 4096')
    a('s_add_u32 s31, s29, 8192')
    a('v_lshl_add_u32 v46, v2, 1, v3')
    a('v_mul_u32_u24 v47, 20, v46')
    a('v_lshlrev_b32 v156, 1, v47')
    a('s_mov_b32 s27, 0xffff0000')
    a('s_waitcnt lgkmcnt(0)')
    srd(a, 16, 4, VP_SZ, VP)
    srd(a, 8, 6, 2048 * 1280)
    srd(a, 12, 4, MOD_SZ, MOD + 2 * 2560)
    srd(a, 40, 4, X1_SZ, X1)
    srd(a, 44, 4, H2_SZ, H2)
    a(f's_mov_b32 s14, {4*2560}')
    for i in range(3):
        a(f'buffer_load_dwordx4 {vr(DV+4*i,4)}, v15, s[16:19], s{29+i} offen')
    load_tab(a, MA, 24, 'A', 9, 20, 28)
    load_tab(a, TW, 32, 'tw3', 9, 20, 28)
    load_tab(a, B1, 32, 'B1', 9, 20, 28)
    a(f'buffer_load_dwordx4 {vr(XA,4)}, v47, s[8:11], s25 offen')
    a(f'buffer_load_dword v{XA+4}, v47, s[8:11], s25 offen offset:16')
    a(f'buffer_load_dwordx4 {vr(XB,4)}, v47, s[8:11], s26 offen')
    a(f'buffer_load_dword v{XB+4}, v47, s[8:11], s26 offen offset:16')
    load40(a, GA, 156, 12, 0)
    load40(a, SB, 156, 12, 2560)
    a('v_add_u32 v156, 5120, v156')
    load40(a, CB, 156, 12, 0)
    a('s_mul_i32 s32, s3, 3584')
    a('v_mul_u32_u24 v157, 112, v2')
    a('v_lshlrev_b32 v158, 3, v3')
    a('v_sub_u32 v158, 88, v158')
    a('v_cmp_eq_u32 vcc, 32, v1')
    a('v_mov_b32 v159, 96')
    a('v_cndmask_b32 v158, v158, v159, vcc')
    a('v_add3_u32 v158, v158, v157, s32')
    a(f'v_mov_b32 v{T}, 0')
    a(f'v_mov_b32 v{T+1}, 0')
    a(f'ds_write_b64 v158, {vr(T,2)}')
    a('s_lshl_b32 s33, s3, 5')
    a('v_cmp_eq_u32 vcc, 0, v3')
    a('v_add_u32 v159, 96, v157')
    for i in range(3):
        a(f'v_add_u32 v{T+2}, s33, v2')
        if i: a(f'v_add_u32 v{T+2}, {128*i}, v{T+2}')
        a(f'v_sub_u32 v{T+3}, 640, v{T+2}')
        a(f'v_cndmask_b32 v{T+3}, v{T+3}, v{T+2}, vcc')
        a(f'v_and_b32 v{T+4}, 31, v{T+3}')
        a(f'v_mul_u32_u24 v{T+4}, 112, v{T+4}')
        a(f'v_lshrrev_b32 v{T+3}, 5, v{T+3}')
        a(f'v_lshl_add_u32 v{252+i}, v{T+3}, 2, v{T+4}')
        if i == 2:
            a(f'v_lshl_add_u32 v{T+3}, v{T+2}, 1, v3')
            a(f'v_mov_b32 v{T+4}, 641')
            a(f'v_cmp_eq_u32 s[34:35], v{T+4}, v{T+3}')
            a(f'v_mov_b32 v{T+5}, 84')
            a(f'v_cndmask_b32 v254, v254, v{T+5}, s[34:35]')
            a(f'v_cmp_lt_u32 s[34:35], v{T+4}, v{T+3}')
            a(f'v_cndmask_b32 v254, v254, v159, s[34:35]')
    a('v_lshl_add_u32 v255, v3, 4, v157')
    a('v_add_u32 v255, s32, v255')
    a('s_waitcnt vmcnt(38)')
    a(f'v_cvt_f32_u32 v{T}, s24')
    a(f'v_mul_f32 v{T}, 0x3a000000, v{T}')
    a(f'v_add_f32 v{T}, v{T}, v{A3C}')
    a(f'v_fma_f32 v{T+1}, v{A3C+1}, v{T}, v{A3C+3}')
    for i in range(4):
        if i & 1: a(f'v_sub_f32 v{T+2}, v{T+1}, v{A3C+2}')
        else: a(f'v_add_f32 v{T+2}, v{T+1}, v{A3C+2}')
        a(f'v_cos_f32 v{T+3}, v{T+2}')
        a(f'v_sin_f32 v{T+4}, v{T+2}')
        if i < 3: a(f'v_add_f32 v{T+1}, v{T+1}, v{T}')
        a(f'v_cvt_pk_bf16_f32 v{A3+i}, v{T+3}, -v{T+4}')
    accs = [AR, AI, A3X]
    for i in range(3):
        a(f's_waitcnt vmcnt({37-i})')
        a(f'{M32} {vr(accs[i],16)}, {vr(A3,4)}, {vr(DV+4*i,4)}, 0')
    for i in range(3):
        for p in range(4):
            a(f'v_cvt_pk_bf16_f32 v{PK+4*i+p}, v{accs[i]+2*p}, v{accs[i]+2*p+1}')
            a(f'ds_write_b32 v{252+i}, v{PK+4*i+p} offset:{3584*p}')
    a('s_waitcnt lgkmcnt(0)')
    a('s_barrier')
    for j in range(3):
        a(f'ds_read_b128 {vr(DV+4*j,4)}, v255 offset:{32*j}')
    a('s_waitcnt vmcnt(29)')
    for j in range(3):
        a(f's_waitcnt lgkmcnt({2-j})')
        a(f'{M32} {vr(AR,16)}, {vr(DV+4*j,4)}, {vr(MA+4*j,4)}, {"0" if j==0 else vr(AR,16)}')
        a(f'{M32} {vr(AI,16)}, {vr(DV+4*j,4)}, {vr(MA+12+4*j,4)}, {"0" if j==0 else vr(AI,16)}')
    a('s_waitcnt vmcnt(21)')
    for r in range(16):
        a(f'v_mul_f32 v{A3X+r}, v{AR+r}, v{TW+r}')
        a(f'v_mul_f32 v{MA+r}, v{AR+r}, v{TW+16+r}')
    for r in range(16):
        a(f'v_fma_f32 v{A3X+r}, -v{AI+r}, v{TW+16+r}, v{A3X+r}')
        a(f'v_fmac_f32 v{MA+r}, v{AI+r}, v{TW+r}')
        a(f'v_cvt_pk_bf16_f32 v{PK+r}, v{MA+r}, v{A3X+r}')
    a('s_waitcnt vmcnt(13)')
    for j in range(4):
        a(f'{M32} {vr(AI,16)}, {vr(PK+4*j,4)}, {vr(B1+4*j,4)}, {"0" if j==0 else vr(AI,16)}')
        a(f'{M32} {vr(AR,16)}, {vr(PK+4*j,4)}, {vr(B1+16+4*j,4)}, {"0" if j==0 else vr(AR,16)}')
    a('s_waitcnt vmcnt(6)')
    unpack10(a, FA, XA, XA+4, 27)
    unpack10(a, FB, XB, XB+4, 27)
    a('s_lshr_b32 s32, s24, 4')
    a('s_mul_i32 s32, s32, 163840')
    a('s_bfe_u32 s33, s24, 0x30001')
    a('s_lshl_b32 s33, s33, 10')
    a('s_add_u32 s32, s32, s33')
    a('s_and_b32 s33, s24, 1')
    a('s_lshl_b32 s33, s33, 7')
    a('s_add_u32 s32, s32, s33')
    a('s_lshl_b32 s33, s3, 4')
    a('s_add_u32 s32, s32, s33')
    a('v_lshrrev_b32 v157, 2, v46')
    a('v_lshlrev_b32 v157, 13, v157')
    a('v_and_b32 v159, 3, v46')
    a('v_lshl_add_u32 v157, v159, 8, v157')
    a('v_lshrrev_b32 v158, 4, v46')
    a('v_lshlrev_b32 v158, 13, v158')
    a('v_lshl_add_u32 v158, v159, 2, v158')
    a('v_bfe_u32 v159, v46, 2, 2')
    a('v_lshl_add_u32 v158, v159, 8, v158')
    a(f'v_add_u32 v158, {16*8192}, v158')
    for i in range(10):
        a(f'v_fmac_f32 v{FA+i}, v{AR+i}, v{GA+i}')
        a(f'v_fmac_f32 v{FB+i}, v{AI+i}, v{GA+i}')
    for i in range(5):
        a(f'v_cvt_pk_bf16_f32 v{XA+i}, v{FA+2*i}, v{FA+2*i+1}')
        a(f'v_cvt_pk_bf16_f32 v{XB+i}, v{FB+2*i}, v{FB+2*i+1}')
    a(f'buffer_store_dwordx4 {vr(XA,4)}, v47, s[40:43], s25 offen')
    a(f'buffer_store_dword v{XA+4}, v47, s[40:43], s25 offen offset:16')
    a(f'buffer_store_dwordx4 {vr(XB,4)}, v47, s[40:43], s26 offen')
    a(f'buffer_store_dword v{XB+4}, v47, s[40:43], s26 offen offset:16')
    unpack10(a, FA, XA, XA+4, 27)
    unpack10(a, FB, XB, XB+4, 27)
    ln_stats(a, FA, FB, T, 48)
    a('s_waitcnt vmcnt(4)')
    for i in range(10):
        a(f'v_fma_f32 v{FA+i}, v{FA+i}, v{T}, v{T+1}')
        a(f'v_fma_f32 v{FB+i}, v{FB+i}, v{T+2}, v{T+3}')
        a(f'v_fma_f32 v{FA+i}, v{FA+i}, v{CB+i}, v{SB+i}')
        a(f'v_fma_f32 v{FB+i}, v{FB+i}, v{CB+i}, v{SB+i}')
    for i in range(5):
        a(f'v_cvt_pk_bf16_f32 v{PK+i}, v{FA+2*i}, v{FA+2*i+1}')
        a(f'v_cvt_pk_bf16_f32 v{PK+8+i}, v{FB+2*i}, v{FB+2*i+1}')
    a(f'buffer_store_dwordx4 {vr(PK,4)}, v157, s[44:47], s32 offen')
    a(f'buffer_store_dword v{PK+4}, v158, s[44:47], s32 offen')
    a(f'buffer_store_dwordx4 {vr(PK+8,4)}, v157, s[44:47], s32 offen offset:64')
    a(f'buffer_store_dword v{PK+12}, v158, s[44:47], s32 offen offset:64')
    a('L3_end:')
    a('s_endpgm')
    return dict(name='k3_kernel', code=a.finalize(), grid=256, block=256, lds=4*3584, vgpr=256, agpr=0)

def g1():
    a = Asm()
    ACC, FR = 16, 112
    PRE = 12
    a('s_cmp_ge_u32 s2, 256')
    a('s_cbranch_scc1 L4_end')
    a(f's_load_dwordx2 s[4:5], s[0:1], {A_WS}')
    a('v_and_b32 v1, 63, v0')
    a('v_lshrrev_b32 v2, 6, v0')
    a('v_readfirstlane_b32 s3, v2')
    a('v_lshlrev_b32 v2, 4, v1')
    a('s_bfe_u32 s24, s2, 0x20001')
    a('s_lshl_b32 s24, s24, 2')
    a('s_lshr_b32 s25, s2, 6')
    a('s_add_u32 s24, s24, s25')
    a('s_and_b32 s25, s2, 1')
    a('s_lshl_b32 s25, s25, 3')
    a('s_bfe_u32 s26, s2, 0x30003')
    a('s_add_u32 s25, s25, s26')
    a('s_lshl_b32 s26, s25, 2')
    a('s_add_u32 s26, s26, s3')
    a('s_mul_i32 s27, s26, 61440')
    a('s_mul_i32 s28, s24, 163840')
    a('s_lshl_b32 s29, s3, 11')
    a('s_add_u32 s28, s28, s29')
    a('s_waitcnt lgkmcnt(0)')
    srd(a, 8, 4, WGU_SZ, WGU)
    srd(a, 12, 4, H2_SZ, H2)
    srd(a, 16, 4, HH_SZ, HH)
    def issue(j):
        a('s_mov_b32 m0, s29')
        a('buffer_load_dwordx4 v2, s[12:15], s28 offen lds')
        a('buffer_load_dwordx4 v2, s[12:15], s28 offen offset:1024 lds')
        for t in range(3):
            a(f'buffer_load_dwordx4 {ar(12*j+4*t,4)}, v2, s[8:11], s27 offen offset:{1024*t}')
        a('s_add_u32 s28, s28, 8192')
        a('s_add_u32 s29, s29, 8192')
        a('s_add_u32 s27, s27, 3072')
    for j in range(PRE): issue(j)
    a('v_add_u32 v3, 0x10000, v2')
    a('v_add_u32 v4, 0x20000, v2')
    def reads(j, nts):
        base = j * 8192
        reg = [2, 3, 4][base >> 16]
        for nt in nts:
            a(f'ds_read_b128 {vr(FR+32*(j&1)+4*nt,4)}, v{reg} offset:{(base & 0xffff) + nt*1024}')
    def outstanding_after(j, issued):
        return 5 * (issued - 1 - j)
    issued = PRE
    a(f's_waitcnt vmcnt({outstanding_after(0, issued)})')
    a('s_barrier')
    reads(0, range(8))
    for j in range(20):
        if j + 1 < 20:
            a(f's_waitcnt vmcnt({outstanding_after(j+1, issued)})')
            a('s_barrier')
        a('s_waitcnt lgkmcnt(0)')
        for nt in range(8):
            for t in range(3):
                acc = vr(ACC + 12*nt + 4*t, 4)
                a(f'{M16} {acc}, {ar(12*j+4*t,4)}, {vr(FR+32*(j&1)+4*nt,4)}, {"0" if j==0 else acc}')
            if j + 1 < 20: reads(j + 1, [nt])
            if nt == 1 and issued < 20:
                issue(issued); issued += 1
    a('s_mul_i32 s30, s26, 3')
    for e in range(3):
        a(f's_add_u32 s31, s30, {e}')
        a(f's_lshr_b32 s{32+e}, s31, 2')
        a(f's_lshl_b32 s{32+e}, s{32+e}, 12')
        a('s_and_b32 s31, s31, 3')
        a('s_lshl_b32 s31, s31, 8')
        a(f's_add_u32 s{32+e}, s{32+e}, s31')
    a('v_and_b32 v5, 15, v1')
    a('v_lshlrev_b32 v5, 4, v5')
    a('v_lshrrev_b32 v6, 4, v1')
    a('v_lshl_add_u32 v8, v6, 2, v5')
    a('v_add_u32 v8, s34, v8')
    a('v_and_b32 v7, 1, v6')
    a('v_lshl_add_u32 v7, v7, 3, v5')
    a('v_mov_b32 v9, s32')
    a('v_mov_b32 v10, s33')
    a('v_cmp_gt_u32 vcc, 32, v1')
    a('v_cndmask_b32 v9, v10, v9, vcc')
    a('v_add_u32 v7, v7, v9')
    a(f's_mul_i32 s35, s24, {2*196608}')
    a('s_add_u32 s36, s35, 196608')
    for nt in range(8):
        b = ACC + 12 * nt
        for r in range(4): a(f'v_max_f32 v{b+r}, 0, v{b+r}')
        for r in range(2): a(f'v_max_f32 v{b+8+r}, 0, v{b+8+r}')
        for r in range(4): a(f'v_mul_f32 v{b+r}, v{b+r}, v{b+4+r}')
        for r in range(2): a(f'v_mul_f32 v{b+8+r}, v{b+8+r}, v{b+10+r}')
        a(f'v_cvt_pk_bf16_f32 v{b+4}, v{b}, v{b+1}')
        a(f'v_cvt_pk_bf16_f32 v{b+5}, v{b+2}, v{b+3}')
        a(f'v_cvt_pk_bf16_f32 v{b+6}, v{b+8}, v{b+9}')
        a(f'buffer_store_dwordx2 {vr(b+4,2)}, v7, s[16:19], s{35+(nt>>2)} offen offset:{1024*(nt&3)}')
        a(f'buffer_store_dword v{b+6}, v8, s[16:19], s{35+(nt>>2)} offen offset:{1024*(nt&3)}')
    a('L4_end:')
    a('s_endpgm')
    return dict(name='g1_kernel', code=a.finalize(), grid=256, block=256, lds=163840, vgpr=176, agpr=240)

def g2():
    a = Asm()
    XR, GB, ACC, HF, RD = 12, 24, 44, 84, 84
    a('s_cmp_ge_u32 s2, 256')
    a('s_cbranch_scc1 L5_end')
    a(f's_load_dwordx2 s[4:5], s[0:1], {A_WS}')
    a(f's_load_dwordx2 s[6:7], s[0:1], {A_OUT}')
    a('v_and_b32 v1, 63, v0')
    a('v_lshrrev_b32 v2, 6, v0')
    a('v_readfirstlane_b32 s3, v2')
    a('v_lshlrev_b32 v2, 4, v1')
    a('s_and_b32 s24, s2, 7')
    a('s_lshl_b32 s24, s24, 2')
    a('s_lshr_b32 s25, s2, 6')
    a('s_add_u32 s24, s24, s25')
    a('s_bfe_u32 s25, s2, 0x30003')
    a('s_lshl_b32 s26, s25, 2')
    a('s_add_u32 s26, s26, s3')
    a('s_mul_i32 s27, s26, 61440')
    a('s_mul_i32 s28, s24, 196608')
    a('s_mul_i32 s29, s3, 49152')
    a('s_add_u32 s28, s28, s29')
    for i in range(4):
        a(f's_add_u32 s{40+i}, s3, {i+1}')
        a(f's_and_b32 s{40+i}, s{40+i}, 3')
        a(f's_lshl_b32 s{40+i}, s{40+i}, 10')
    a('s_waitcnt lgkmcnt(0)')
    srd(a, 8, 4, WD_SZ, WD)
    srd(a, 12, 4, HH_SZ, HH)
    srd(a, 16, 6, 2048 * 1280)
    srd(a, 32, 4, X1_SZ, X1)
    srd(a, 36, 4, 2560, MOD + 5 * 2560)
    def hload(i, j):
        if j == 0: a(f's_add_u32 s30, s28, s{40+i}')
        a(f'buffer_load_dwordx4 {vr(HF+48*(i%3)+4*j,4)}, v2, s[12:15], s30 offen')
        if j < 11: a('s_add_u32 s30, s30, 4096')
    for j in range(12):
        hload(0, j)
        for t in range(5):
            a(f'buffer_load_dwordx4 {ar(20*j+4*t,4)}, v2, s[8:11], s27 offen offset:{1024*(t&3)}')
            if t == 3: a('s_add_u32 s27, s27, 4096')
            if t == 4: a('s_add_u32 s27, s27, 1024')
    a('v_and_b32 v5, 7, v1')
    a('v_lshlrev_b32 v5, 8, v5')
    a('v_bfe_u32 v6, v1, 3, 1')
    a('v_add_u32 v5, v5, v6')
    a('s_lshl_b32 s31, s24, 3')
    a('s_lshl_b32 s44, s3, 1')
    a('s_add_u32 s31, s31, s44')
    a('v_add_u32 v5, s31, v5')
    a('v_mul_u32_u24 v5, 1280, v5')
    a('v_lshrrev_b32 v6, 4, v1')
    a('v_mul_u32_u24 v7, 40, v6')
    a('s_mul_i32 s44, s25, 160')
    a('v_add3_u32 v5, v5, v7, s44')
    a('v_lshlrev_b32 v7, 1, v7')
    a('s_lshl_b32 s44, s44, 1')
    a('v_add_u32 v7, s44, v7')
    for i in range(3):
        a(f's_mul_i32 s44, s{40+i}, 15')
        a(f's_add_u32 s44, s44, {i*5120}')
        a(f'v_add_u32 v{8+i}, s44, v2')
    a('s_mul_i32 s44, s3, 15360')
    a('v_add_u32 v11, s44, v2')
    a('s_mov_b32 s45, 0xffff0000')
    for i in range(4):
        acc = ACC + 20 * (i & 1)
        for j in range(12):
            if i == 0:
                a(f's_waitcnt vmcnt({min(63, (11-j)*6 + j)})')
            elif i == 1:
                a(f's_waitcnt vmcnt({(11-j) + j})')
            elif i == 2:
                a(f's_waitcnt vmcnt({(11-j) + 8 + j})')
            else:
                a(f's_waitcnt vmcnt({11-j})')
            for t in range(5):
                c = vr(acc + 4*t, 4)
                a(f'{M16} {c}, {ar(20*j+4*t,4)}, {vr(HF+48*(i%3)+4*j,4)}, {"0" if j==0 else c}')
            if i < 3: hload(i + 1, j)
            if i > 0 and 2 <= j < 7:
                pa = ACC + 20 * ((i - 1) & 1)
                a(f'ds_write_b128 v{8+i-1}, {vr(pa+4*(j-2),4)} offset:{1024*(j-2)}')
        if i == 1:
            load40(a, XR, 5, 32, 0)
            for q in range(5):
                a(f'buffer_load_dwordx4 {vr(GB+4*q,4)}, v7, s[36:39], 0 offen offset:{16*q}')
    a('s_waitcnt lgkmcnt(0)')
    a('s_barrier')
    RD = HF + 48
    for q in range(15):
        a(f'ds_read_b128 {vr(RD+4*q,4)}, v11 offset:{1024*q}')
    acc = ACC + 20
    U = ACC
    for i in range(10):
        a(f'v_lshlrev_b32 v{U+2*i}, 16, v{XR+i}')
        a(f'v_and_b32 v{U+2*i+1}, s45, v{XR+i}')
    for s in range(3):
        a(f's_waitcnt lgkmcnt({10-5*s})')
        for k in range(20): a(f'v_add_f32 v{acc+k}, v{acc+k}, v{RD+20*s+k}')
    for k in range(20): a(f'v_fmac_f32 v{U+k}, v{acc+k}, v{GB+k}')
    for i in range(10): a(f'v_cvt_pk_bf16_f32 v{XR+i}, v{U+2*i}, v{U+2*i+1}')
    a(f'buffer_store_dwordx4 {vr(XR,4)}, v5, s[16:19], 0 offen')
    a(f'buffer_store_dwordx4 {vr(XR+4,4)}, v5, s[16:19], 0 offen offset:16')
    a(f'buffer_store_dwordx2 {vr(XR+8,2)}, v5, s[16:19], 0 offen offset:32')
    a('L5_end:')
    a('s_endpgm')
    return dict(name='g2_kernel', code=a.finalize(), grid=256, block=256, lds=4*15360, vgpr=228, agpr=240)

def emit(kernels, path):
    hdr = open('adaLN_cond__spectral_gfnet__glu_gated_reglu__prompt.s.ref').read().split('\n')
    s = '\n'.join(l for l in hdr if l.startswith(';') and '@launch' not in l and 'Override' not in l and 'grid=ceil' not in l) + '\n'
    for k in kernels:
        s += f"; @launch kernel={k['name']} grid=({k['grid']},1,1) block=({k['block']},1,1) lds={k['lds']}\n"
    s += '.amdgcn_target "amdgcn-amd-amdhsa--gfx950"\n.text\n'
    seen = []
    for k in kernels:
        if k['name'] in seen: continue
        seen.append(k['name'])
        s += f".globl {k['name']}\n.p2align 8\n.type {k['name']},@function\n{k['name']}:\n{k['code']}"
    s += '.p2align 8\n.type tab_data,@object\ntab_data:\n'
    for i in range(0, TAB.size, 8):
        s += '.long ' + ','.join(f'0x{x:x}' for x in TAB[i:i+8]) + '\n'
    s += f'.size tab_data, {TAB_SZ}\n'
    s += '.section .rodata,"a"\n'
    seen = []
    for k in kernels:
        if k['name'] in seen: continue
        seen.append(k['name'])
        acc = (k['vgpr'] + 3) // 4 * 4
        nfv = acc + k['agpr'] if k['agpr'] else k['vgpr']
        s += f""".p2align 6
.amdhsa_kernel {k['name']}
  .amdhsa_next_free_vgpr {nfv}
  .amdhsa_next_free_sgpr {k.get('sgpr', 64)}
  .amdhsa_accum_offset {acc}
  .amdhsa_group_segment_fixed_size 0
  .amdhsa_kernarg_size 96
  .amdhsa_user_sgpr_count 2
  .amdhsa_user_sgpr_kernarg_segment_ptr 1
  .amdhsa_system_sgpr_workgroup_id_x 1
.end_amdhsa_kernel
"""
    open(path, 'w').write(s)

if __name__ == '__main__':
    out = sys.argv[1] if len(sys.argv) > 1 else 'adaLN_cond__spectral_gfnet__glu_gated_reglu__prompt.s'
    emit([k0(), k1(), k2(), k3(), g1(), g2()], out)
```

```python
import sys
sys.path.insert(0, 'gen')
from asmlib import *
import tables

MOD, MOD_SZ = 0, 6 * 640 * 4
VV, VV_SZ = 0x100000, 321 * 8192
VPS = 10368
VP, VP_SZ = 0x400000, 256 * VPS + 4096
WW, WW_SZ = 0x700000, 321 * 8192
WGU, WGU_SZ = 0xA00000, 64 * 60 * 1024
WD, WD_SZ = 0xE00000, 8 * 240 * 1024
X1, X1_SZ = 0x1000000, 2048 * 1280
H2, H2_SZ = 0x1300000, 2048 * 1280
HH, HH_SZ = 0x1600000, 2048 * 3072
A_X, A_WR, A_WI, A_WG, A_WU, A_WD, A_C, A_WM, A_OUT, A_DBG, A_WS = 0, 8, 16, 32, 40, 48, 56, 64, 72, 80, 88
TAB, TOFF = tables.build()
TAB_SZ = TAB.size * 4

def srd(a, d, lo, size, off=0):
    if off:
        a(f's_add_u32 s{d}, s{lo}, {off}')
        a(f's_addc_u32 s{d+1}, s{lo+1}, 0')
    else:
        a(f's_mov_b32 s{d}, s{lo}')
        a(f's_mov_b32 s{d+1}, s{lo+1}')
    a(f's_mov_b32 s{d+2}, {size}')
    a(f's_mov_b32 s{d+3}, 0x20000')

def srd_tab(a, d, tag):
    a(f's_getpc_b64 s[{d}:{d+1}]')
    a(f'Lpc_{tag}:')
    a(f's_add_u32 s{d}, s{d}, tab_data-Lpc_{tag}')
    a(f's_addc_u32 s{d+1}, s{d+1}, 0')
    a(f's_mov_b32 s{d+2}, {TAB_SZ}')
    a(f's_mov_b32 s{d+3}, 0x20000')

def load_tab(a, dst, nregs, name, voff, srdr, stmp):
    n = nregs // 4
    base = TOFF[name]
    cur = None
    for i in range(n):
        o = base + i * 1024
        hi = o & ~4095
        if hi != cur:
            a(f's_mov_b32 s{stmp}, {hi}'); cur = hi
        a(f'buffer_load_dwordx4 {vr(dst+4*i,4)}, v{voff}, {sr(srdr,4)}, s{stmp} offen offset:{o-hi}')

def wave_reduce(a, regs, sdst):
    for m in ('quad_perm:[1,0,3,2] row_mask:0xf bank_mask:0xf', 'quad_perm:[2,3,0,1] row_mask:0xf bank_mask:0xf',
              'row_ror:4 row_mask:0xf bank_mask:0xf', 'row_ror:8 row_mask:0xf bank_mask:0xf',
              'row_bcast:15 row_mask:0xa bank_mask:0xf', 'row_bcast:31 row_mask:0xc bank_mask:0xf'):
        for r in regs:
            a(f'v_add_f32_dpp v{r}, v{r}, v{r} {m}')
    for i, r in enumerate(regs):
        a(f'v_readlane_b32 s{sdst+i}, v{r}, 63')

def ln_stats(a, fA, fB, t, st):
    a(f'v_readfirstlane_b32 s{st}, v{fA}')
    a(f'v_readfirstlane_b32 s{st+1}, v{fB}')
    for i in range(10):
        a(f'v_subrev_f32 v{fA+i}, s{st}, v{fA+i}')
        a(f'v_subrev_f32 v{fB+i}, s{st+1}, v{fB+i}')
    a(f'v_add_f32 v{t}, v{fA}, v{fA+1}')
    a(f'v_mul_f32 v{t+1}, v{fA}, v{fA}')
    a(f'v_add_f32 v{t+2}, v{fB}, v{fB+1}')
    a(f'v_mul_f32 v{t+3}, v{fB}, v{fB}')
    for i in range(1, 10):
        if i > 1: a(f'v_add_f32 v{t}, v{t}, v{fA+i}')
        a(f'v_fmac_f32 v{t+1}, v{fA+i}, v{fA+i}')
        if i > 1: a(f'v_add_f32 v{t+2}, v{t+2}, v{fB+i}')
        a(f'v_fmac_f32 v{t+3}, v{fB+i}, v{fB+i}')
    wave_reduce(a, [t, t+1, t+2, t+3], st + 2)
    a(f'v_mov_b32 v{t+4}, 0x3acccccd')
    a(f'v_mul_f32 v{t+5}, s{st+2}, v{t+4}')
    a(f'v_mul_f32 v{t+6}, s{st+4}, v{t+4}')
    a(f'v_mul_f32 v{t}, s{st+3}, v{t+4}')
    a(f'v_mul_f32 v{t+2}, s{st+5}, v{t+4}')
    a(f'v_fma_f32 v{t}, -v{t+5}, v{t+5}, v{t}')
    a(f'v_fma_f32 v{t+2}, -v{t+6}, v{t+6}, v{t+2}')
    a(f'v_max_f32 v{t}, 0, v{t}')
    a(f'v_max_f32 v{t+2}, 0, v{t+2}')
    a(f'v_add_f32 v{t}, 0x3727c5ac, v{t}')
    a(f'v_add_f32 v{t+2}, 0x3727c5ac, v{t+2}')
    a(f'v_rsq_f32 v{t}, v{t}')
    a(f'v_rsq_f32 v{t+2}, v{t+2}')
    a(f'v_mul_f32 v{t+1}, -v{t+5}, v{t}')
    a(f'v_mul_f32 v{t+3}, -v{t+6}, v{t+2}')

def unpack10(a, dst, src4, src1, smask):
    srcs = [src4, src4+1, src4+2, src4+3, src1]
    for i, s in enumerate(srcs):
        a(f'v_lshlrev_b32 v{dst+2*i}, 16, v{s}')
        a(f'v_and_b32 v{dst+2*i+1}, s{smask}, v{s}')

def load40(a, dst, voff, srdr, off):
    a(f'buffer_load_dwordx4 {vr(dst,4)}, v{voff}, {sr(srdr,4)}, 0 offen offset:{off}')
    a(f'buffer_load_dwordx4 {vr(dst+4,4)}, v{voff}, {sr(srdr,4)}, 0 offen offset:{off+16}')
    a(f'buffer_load_dwordx2 {vr(dst+8,2)}, v{voff}, {sr(srdr,4)}, 0 offen offset:{off+32}')

import os
INSTR = os.environ.get('INSTR', '0') == '1'
STAMP = 0x2000000
class St:
    def __init__(self, a, kid):
        self.a = a; self.kid = kid; self.n = 0
        if INSTR:
            a('s_memrealtime s[64:65]')
            self.stamp()
    def stamp(self, wait=None):
        if not INSTR: return
        if wait: self.a(wait)
        self.a(f's_memtime s[{68+2*self.n}:{69+2*self.n}]'); self.n += 1
    def end(self, wsreg=4, wavereg=3, drain=True):
        if not INSTR: return
        a = self.a
        self.stamp()
        if drain:
            self.stamp('s_waitcnt vmcnt(0)')
        a('s_memrealtime s[66:67]')
        a('s_mov_b64 exec, -1')
        a(f's_add_u32 s96, s{wsreg}, {STAMP + self.kid * 0x100000}')
        a(f's_addc_u32 s97, s{wsreg+1}, 0')
        a('s_mov_b32 s98, 0x100000')
        a('s_mov_b32 s99, 0x20000')
        a('s_lshl_b32 s100, s2, 9')
        a(f's_lshl_b32 s101, s{wavereg}, 6')
        a('s_add_u32 s100, s100, s101')
        a('s_waitcnt lgkmcnt(0)')
        a('v_mov_b32 v1, 0')
        vals = [64, 66] + [68 + 2 * i for i in range(self.n)]
        for i, r in enumerate(vals):
            a(f'v_mov_b32 v2, s{r}')
            a(f'buffer_store_dword v2, v1, s[96:99], s100 offen offset:{4*i}')
M32 = 'v_mfma_f32_32x32x16_bf16'
M16 = 'v_mfma_f32_16x16x32_bf16'

def k0():
    a = Asm()
    NMOD, NW, NGU, ND = 240, 321, 120, 60
    a(f's_cmp_ge_u32 s2, {NMOD+NW+NGU+ND}')
    a('s_cbranch_scc1 L0_end')
    a(f's_load_dwordx2 s[4:5], s[0:1], {A_WS}')
    a(f's_load_dwordx4 s[8:11], s[0:1], {A_WR}')
    a(f's_load_dwordx4 s[12:15], s[0:1], {A_WG}')
    a(f's_load_dwordx4 s[16:19], s[0:1], {A_WD}')
    a(f's_load_dwordx2 s[20:21], s[0:1], {A_WM}')
    a('v_and_b32 v1, 63, v0')
    a('v_lshrrev_b32 v2, 6, v0')
    a('v_readfirstlane_b32 s3, v2')
    a('s_mov_b32 s22, 0xffff0000')
    a(f's_cmp_ge_u32 s2, {NMOD}')
    a('s_cbranch_scc1 L0_w')
    a('s_and_b32 s23, s2, 7')
    a('s_mul_i32 s23, s23, 30')
    a('s_lshr_b32 s24, s2, 3')
    a('s_add_u32 s23, s23, s24')
    a('s_waitcnt lgkmcnt(0)')
    srd(a, 28, 20, 640 * 7680)
    srd(a, 32, 18, 1280)
    srd(a, 36, 4, MOD_SZ, MOD)
    a('v_lshrrev_b32 v3, 1, v0')
    a('v_and_b32 v4, 1, v0')
    a('v_mul_u32_u24 v5, 7680, v3')
    a('v_lshl_add_u32 v5, v4, 4, v5')
    a('v_lshlrev_b32 v6, 1, v3')
    a('s_lshl_b32 s24, s23, 5')
    for i in range(5):
        a(f'buffer_load_ushort v{8+i}, v6, s[32:35], 0 offen offset:{i*256}')
    for i in range(5):
        a(f'buffer_load_dwordx4 {vr(16+4*i,4)}, v5, s[28:31], s24 offen')
        if i < 4: a(f's_add_u32 s24, s24, {128*7680}')
    a('s_waitcnt vmcnt(5)')
    for i in range(5): a(f'v_lshlrev_b32 v{8+i}, 16, v{8+i}')
    for i in range(5): a(f'v_mul_f32 v{40+i}, 0xbfb8aa3b, v{8+i}')
    for i in range(5): a(f'v_exp_f32 v{40+i}, v{40+i}')
    for i in range(5): a(f'v_add_f32 v{40+i}, 1.0, v{40+i}')
    for i in range(5): a(f'v_rcp_f32 v{40+i}, v{40+i}')
    for i in range(5): a(f'v_mul_f32 v{8+i}, v{8+i}, v{40+i}')
    for i in range(5): a(f'v_cvt_pk_bf16_f32 v{8+i}, v{8+i}, v{8+i}')
    for i in range(5): a(f'v_and_b32 v{8+i}, s22, v{8+i}')
    for i in range(5):
        a(f's_waitcnt vmcnt({4-i})')
        for q in range(4):
            a(f'v_lshlrev_b32 v40, 16, v{16+4*i+q}')
            a(f'v_and_b32 v41, s22, v{16+4*i+q}')
            if i == 0:
                a(f'v_mul_f32 v{48+2*q}, v40, v8')
                a(f'v_mul_f32 v{49+2*q}, v41, v8')
            else:
                a(f'v_fmac_f32 v{48+2*q}, v40, v{8+i}')
                a(f'v_fmac_f32 v{49+2*q}, v41, v{8+i}')
    for m in ('quad_perm:[2,3,0,1]', 'row_ror:4', 'row_ror:8'):
        for q in range(8):
            a(f'v_add_f32_dpp v{48+q}, v{48+q}, v{48+q} {m} row_mask:0xf bank_mask:0xf')
    a('v_lshrrev_b32 v7, 4, v0')
    a('v_lshlrev_b32 v7, 6, v7')
    a('v_lshl_add_u32 v7, v4, 5, v7')
    a('v_and_b32 v13, 14, v0')
    a('v_cmp_eq_u32 vcc, 0, v13')
    a('s_and_saveexec_b64 s[26:27], vcc')
    a('ds_write_b128 v7, v[48:51]')
    a('ds_write_b128 v7, v[52:55] offset:16')
    a('s_mov_b64 exec, s[26:27]')
    a('s_waitcnt lgkmcnt(0)')
    a('s_barrier')
    a('s_cmp_lg_u32 s3, 0')
    a('s_cbranch_scc1 L0_end')
    a('v_and_b32 v13, 15, v0')
    a('v_lshlrev_b32 v7, 2, v13')
    for i in range(16): a(f'ds_read_b32 v{16+i}, v7 offset:{i*64}')
    a('s_mul_i32 s24, s23, 1639')
    a('s_lshr_b32 s24, s24, 16')
    a('s_cmp_eq_u32 s24, 1')
    a('s_cselect_b32 s25, 1.0, 0')
    a('s_cmp_eq_u32 s24, 4')
    a('s_cselect_b32 s25, 1.0, s25')
    a('s_lshl_b32 s24, s23, 6')
    a('s_waitcnt lgkmcnt(0)')
    for st in (8, 4, 2, 1):
        for i in range(st): a(f'v_add_f32 v{16+i}, v{16+i}, v{16+i+st}')
    a('v_cvt_pk_bf16_f32 v16, v16, v16')
    a('v_and_b32 v16, s22, v16')
    a('v_add_f32 v16, s25, v16')
    a('v_cvt_pk_bf16_f32 v16, v16, v16')
    a('v_and_b32 v16, s22, v16')
    a('v_cmp_gt_u32 vcc, 16, v1')
    a('s_and_saveexec_b64 s[26:27], vcc')
    a('buffer_store_dword v16, v7, s[36:39], s24 offen')
    a('s_endpgm')
    a('L0_w:')
    a(f's_cmp_ge_u32 s2, {NMOD+NW}')
    a('s_cbranch_scc1 L0_gu')
    a(f's_sub_u32 s23, s2, {NMOD}')
    a('s_waitcnt lgkmcnt(0)')
    srd(a, 28, 8, 2048 * 642)
    srd(a, 32, 10, 2048 * 642)
    srd(a, 36, 4, WW_SZ, WW)
    a('s_and_b32 s24, s23, 63')
    a('s_lshl_b32 s24, s24, 3')
    a('s_lshl_b32 s25, s3, 1')
    a('s_add_u32 s24, s24, s25')
    a('v_mov_b32 v3, s24')
    a('s_andn2_b32 s24, s23, 63')
    a('v_add_u32 v4, s24, v1')
    a('s_cmp_lt_u32 s23, 320')
    a('s_cbranch_scc1 L0_w1')
    a('v_lshlrev_b32 v3, 1, v0')
    a('v_mov_b32 v4, 320')
    a('L0_w1:')
    a('v_lshrrev_b32 v5, 6, v3')
    a('v_bfe_u32 v6, v3, 4, 2')
    a('v_lshl_add_u32 v5, v6, 9, v5')
    a('v_and_b32 v6, 15, v3')
    a('v_lshl_add_u32 v5, v6, 3, v5')
    a('v_mul_u32_u24 v5, 642, v5')
    a('v_lshl_add_u32 v5, v4, 1, v5')
    a('v_add_u32 v6, 5136, v5')
    a('v_lshlrev_b32 v7, 13, v4')
    a('v_lshl_add_u32 v7, v3, 4, v7')
    for r in range(1, 4): a(f's_mov_b32 s{40+r}, {r*82176}')
    for e in range(2):
        for r in range(4):
            so = '0' if r == 0 else f's{40+r}'
            a(f'buffer_load_ushort v{8+8*e+r}, v{5+e}, s[28:31], {so} offen')
            a(f'buffer_load_ushort v{12+8*e+r}, v{5+e}, s[32:35], {so} offen')
    for e in range(2):
        a(f's_waitcnt vmcnt({8-8*e})' if e == 0 else 's_waitcnt vmcnt(1)')
        for r in range(4):
            a(f'v_lshl_or_b32 v{8+8*e+r}, v{12+8*e+r}, 16, v{8+8*e+r}')
        a(f'buffer_store_dwordx4 {vr(8+8*e,4)}, v7, s[36:39], 0 offen offset:{16*e}')
    a('s_endpgm')
    def transpose8(a, src, dst):
        for i in range(8):
            for pp in range(4):
                a(f'v_perm_b32 v{dst+4*i+pp}, v{src+4*(2*pp+1)+(i>>1)}, v{src+4*(2*pp)+(i>>1)}, s{50+(i&1)}')
    a('L0_gu:')
    a('s_mov_b32 s50, 0x05040100')
    a('s_mov_b32 s51, 0x07060302')
    a(f's_cmp_ge_u32 s2, {NMOD+NW+NGU}')
    a('s_cbranch_scc1 L0_d')
    a(f's_sub_u32 s23, s2, {NMOD+NW}')
    a('s_lshl_b32 s23, s23, 2')
    a('s_add_u32 s23, s23, s3')
    a('s_waitcnt lgkmcnt(0)')
    a('s_cmp_ge_u32 s23, 240')
    a('s_cselect_b32 s24, 1, 0')
    a('s_cselect_b32 s28, s14, s12')
    a('s_cselect_b32 s29, s15, s13')
    a('s_cselect_b32 s25, 240, 0')
    a(f's_mov_b32 s30, {640*3072}')
    a('s_mov_b32 s31, 0x20000')
    srd(a, 36, 4, WGU_SZ, WGU)
    a('s_sub_u32 s23, s23, s25')
    a('s_mul_i32 s25, s23, 342')
    a('s_lshr_b32 s25, s25, 10')
    a('s_mul_i32 s26, s25, 3')
    a('s_sub_u32 s26, s23, s26')
    a('s_mul_i32 s40, s25, 10')
    a('s_mul_i32 s41, s25, 40')
    a(f's_sub_u32 s41, s41, {64*40-8}')
    a('s_cmp_lt_u32 s25, 64')
    a('s_cselect_b32 s40, s40, s41')
    a('s_cselect_b32 s41, 2, 10')
    a('s_mul_i32 s41, s41, 3072')
    a('s_mul_i32 s40, s40, 3072')
    a('s_lshl_b32 s42, s26, 10')
    a('s_add_u32 s40, s40, s42')
    a('v_lshlrev_b32 v3, 4, v1')
    for e2 in range(4):
        a(f'buffer_load_dwordx4 {vr(8+8*e2,4)}, v3, s[28:31], s40 offen')
        a(f'buffer_load_dwordx4 {vr(12+8*e2,4)}, v3, s[28:31], s40 offen offset:3072')
        if e2 < 3: a('s_add_u32 s40, s40, s41')
    a('s_lshl_b32 s42, s26, 6')
    a('v_add_u32 v4, s42, v1')
    a('v_mul_u32_u24 v5, 342, v4')
    a('v_lshrrev_b32 v5, 10, v5')
    a('v_mul_u32_u24 v6, 3, v5')
    a('v_sub_u32 v6, v4, v6')
    a('v_mul_u32_u24 v5, 61440, v5')
    a('s_lshr_b32 s42, s25, 2')
    a('s_mul_i32 s42, s42, 3072')
    a('s_and_b32 s43, s25, 3')
    a('s_lshl_b32 s43, s43, 8')
    a('s_add_u32 s42, s42, s43')
    a('s_lshl_b32 s43, s24, 10')
    a('v_lshl_add_u32 v7, v6, 7, s43')
    a('s_lshl_b32 s43, s24, 5')
    a('s_add_u32 s43, s43, 2048')
    a('v_mov_b32 v72, s43')
    a('v_cmp_gt_u32 vcc, 2, v6')
    a('v_cndmask_b32 v7, v72, v7, vcc')
    a('v_add_u32 v72, v5, v7')
    a('v_mov_b32 v7, 64')
    a('v_cndmask_b32 v7, v7, 32, vcc')
    a('v_add_u32 v73, v72, v7')
    a('v_add_u32 v74, v73, v7')
    a('v_add_u32 v75, v74, v7')
    a('s_waitcnt vmcnt(0)')
    transpose8(a, 8, 40)
    for i in range(8):
        a(f'buffer_store_dwordx4 {vr(40+4*i,4)}, v{72+(i>>1)}, s[36:39], s42 offen offset:{16*(i&1)}')
    a('s_endpgm')
    a('L0_d:')
    a(f's_sub_u32 s23, s2, {NMOD+NW+NGU}')
    a('s_lshl_b32 s23, s23, 8')
    a('s_waitcnt lgkmcnt(0)')
    srd(a, 28, 16, 1536 * 1280)
    srd(a, 36, 4, WD_SZ, WD)
    a('v_add_u32 v3, s23, v0')
    a('v_mul_u32_u24 v4, 52429, v3')
    a('v_lshrrev_b32 v4, 22, v4')
    a('v_mul_u32_u24 v5, 80, v4')
    a('v_sub_u32 v5, v3, v5')
    a('v_mul_u32_u24 v6, 10240, v4')
    a('v_lshl_add_u32 v6, v5, 4, v6')
    a('s_mov_b32 s40, 5120')
    for e in range(8):
        so = '0' if e < 4 else 's40'
        a(f'buffer_load_dwordx4 {vr(8+4*e,4)}, v6, s[28:31], {so} offen offset:{(e&3)*1280}')
    a('v_lshrrev_b32 v7, 2, v4')
    a('v_mul_u32_u24 v7, 5120, v7')
    a('v_and_b32 v6, 3, v4')
    a('v_lshl_add_u32 v7, v6, 8, v7')
    for hq in range(2):
        a(f'v_lshl_add_u32 v76, v5, 1, {hq}')
        a('v_mul_u32_u24 v77, 205, v76')
        a('v_lshrrev_b32 v77, 12, v77')
        a('v_mul_u32_u24 v78, 20, v77')
        a('v_sub_u32 v76, v76, v78')
        a('v_mul_u32_u24 v78, 52, v76')
        a('v_lshrrev_b32 v78, 8, v78')
        a('v_mul_u32_u24 v79, 5, v78')
        a('v_sub_u32 v76, v76, v79')
        a('v_mul_u32_u24 v77, 245760, v77')
        a('v_lshl_add_u32 v77, v76, 10, v77')
        a('v_lshl_add_u32 v77, v78, 6, v77')
        a(f'v_add_u32 v{72+hq}, v77, v7')
    a('s_waitcnt vmcnt(0)')
    transpose8(a, 8, 40)
    for i in range(8):
        a(f'buffer_store_dwordx4 {vr(40+4*i,4)}, v{72+(i>>2)}, s[36:39], 0 offen offset:{16*(i&3)}')
    a('L0_end:')
    a('s_endpgm')
    return dict(name='k0_kernel', code=a.finalize(), grid=NMOD+NW+NGU+ND, block=256, lds=1024, vgpr=80, agpr=0)

def k1():
    a = Asm()
    XA, XB, CA, SA, B1, A2, TW, A3C, A3, FA, FB, FR, AR, AI, PK, T = 4, 10, 16, 26, 36, 68, 92, 112, 116, 120, 130, 140, 160, 176, 192, 204
    T2 = 4 * 2880
    a('s_cmp_ge_u32 s2, 256')
    a('s_cbranch_scc1 L1_end')
    st = St(a, 1)
    a(f's_load_dwordx2 s[4:5], s[0:1], {A_WS}')
    a(f's_load_dwordx2 s[6:7], s[0:1], {A_X}')
    srd_tab(a, 20, 'k1')
    a('v_and_b32 v1, 63, v0')
    a('v_lshrrev_b32 v2, 6, v0')
    a('v_readfirstlane_b32 s3, v2')
    a('s_and_b32 s24, s2, 7')
    a('s_lshl_b32 s24, s24, 5')
    a('s_lshr_b32 s25, s2, 3')
    a('s_add_u32 s24, s24, s25')
    a('s_lshl_b32 s25, s3, 8')
    a('s_add_u32 s25, s25, s24')
    a('s_mul_i32 s25, s25, 1280')
    a(f's_add_u32 s26, s25, {1024*1280}')
    a('v_mul_u32_u24 v2, 20, v1')
    a('v_lshlrev_b32 v3, 1, v2')
    a('v_lshlrev_b32 v9, 4, v1')
    a('s_mov_b32 s27, 0xffff0000')
    a('s_waitcnt lgkmcnt(0)')
    srd(a, 8, 6, 2048 * 1280)
    srd(a, 12, 4, MOD_SZ, MOD)
    srd(a, 16, 4, VV_SZ, VV)
    a(f'buffer_load_dwordx4 {vr(XA,4)}, v2, s[8:11], s25 offen')
    a(f'buffer_load_dword v{XA+4}, v2, s[8:11], s25 offen offset:16')
    a(f'buffer_load_dwordx4 {vr(XB,4)}, v2, s[8:11], s26 offen')
    a(f'buffer_load_dword v{XB+4}, v2, s[8:11], s26 offen offset:16')
    load40(a, CA, 3, 12, 2560)
    load40(a, SA, 3, 12, 0)
    load_tab(a, A3C, 4, 'a3c', 9, 20, 28)
    load_tab(a, B1, 32, 'B1', 9, 20, 28)
    load_tab(a, TW, 20, 'tw1', 9, 20, 28)
    load_tab(a, A2, 24, 'A2', 9, 20, 28)
    a('v_and_b32 v15, 1, v1')
    a('v_mul_u32_u24 v15, 1440, v15')
    a('v_lshrrev_b32 v2, 1, v1')
    a('v_lshl_add_u32 v15, v2, 2, v15')
    a('s_mul_i32 s29, s3, 2880')
    a('v_add_u32 v15, s29, v15')
    a('v_and_b32 v2, 3, v1')
    a('v_bfe_u32 v3, v1, 3, 2')
    a('v_lshl_add_u32 v2, v3, 2, v2')
    a('v_min_u32 v2, 9, v2')
    a('v_bfe_u32 v3, v1, 2, 1')
    a('v_mul_u32_u24 v3, 10, v3')
    a('v_add_u32 v2, v2, v3')
    a('v_mul_u32_u24 v2, 144, v2')
    a('v_lshrrev_b32 v3, 5, v1')
    a('v_lshl_add_u32 v2, v3, 4, v2')
    a('v_add_u32 v156, s29, v2')
    a('v_and_b32 v2, 31, v1')
    a('v_mul_u32_u24 v157, 5120, v3')
    a('v_lshl_add_u32 v157, v2, 4, v157')
    a('s_lshl_b32 s29, s3, 2')
    a(f's_add_u32 s29, s29, {T2}')
    a('v_add_u32 v157, s29, v157')
    a('s_lshl_b32 s29, s3, 5')
    a('v_cmp_eq_u32 vcc, 0, v3')
    for i in range(3):
        a(f'v_add_u32 v158, s29, v2')
        if i: a(f'v_add_u32 v158, {128*i}, v158')
        a('v_sub_u32 v159, 640, v158')
        if i == 0:
            a('v_cmp_ne_u32 s[30:31], 0, v158')
            a('v_cndmask_b32 v159, 0, v159, s[30:31]')
        a('v_cndmask_b32 v159, v159, v158, vcc')
        a(f'v_lshlrev_b32 v{212+i}, 4, v159')
        a(f'v_add_u32 v{212+i}, {T2}, v{212+i}')
        a(f'v_lshlrev_b32 v{215+i}, 13, v158')
        a(f'v_lshl_add_u32 v{215+i}, v3, 12, v{215+i}')
    a('s_bfe_u32 s29, s24, 0x20004')
    a('s_lshl_b32 s29, s29, 10')
    a('s_lshr_b32 s30, s24, 6')
    a('s_lshl_b32 s30, s30, 8')
    a('s_add_u32 s29, s29, s30')
    a('s_and_b32 s30, s24, 15')
    a('s_lshl_b32 s30, s30, 4')
    a('s_add_u32 s29, s29, s30')
    a(f'v_mov_b32 v{PK+10}, 0')
    a(f'v_mov_b32 v{PK+11}, 0')
    a('s_waitcnt vmcnt(26)')
    st.stamp()
    unpack10(a, FA, XA, XA+4, 27)
    unpack10(a, FB, XB, XB+4, 27)
    ln_stats(a, FA, FB, T, 32)
    a('s_waitcnt vmcnt(19)')
    st.stamp()
    for i in range(10):
        a(f'v_fma_f32 v{FA+i}, v{FA+i}, v{T}, v{T+1}')
        a(f'v_fma_f32 v{FB+i}, v{FB+i}, v{T+2}, v{T+3}')
        a(f'v_fma_f32 v{FA+i}, v{FA+i}, v{CA+i}, v{SA+i}')
        a(f'v_fma_f32 v{FB+i}, v{FB+i}, v{CA+i}, v{SA+i}')
        a(f'v_cvt_pk_bf16_f32 v{FA+i}, v{FA+i}, v{FB+i}')
        a(f'ds_write_b32 v15, v{FA+i} offset:{144*i}')
    a('v_cvt_f32_u32 v158, s24')
    a(f'v_fma_f32 v158, v{A3C}, v158, v{A3C+1}')
    a('s_waitcnt lgkmcnt(0)')
    for j in range(4):
        a(f'ds_read_b128 {vr(FR+4*j,4)}, v156 offset:{32*j}')
    for p in range(4):
        a(f'v_add_f32 v159, v158, v{A3C+2}')
        a(f'v_cos_f32 v{T+4}, v158')
        a(f'v_cos_f32 v159, v159')
        if p < 3: a(f'v_add_f32 v158, v158, v{A3C+3}')
        a(f'v_cvt_pk_bf16_f32 v{A3+p}, v{T+4}, v159')
    a('s_waitcnt vmcnt(11)')
    st.stamp()
    for j in range(4):
        a(f's_waitcnt lgkmcnt({3-j})')
        a(f'{M32} {vr(AR,16)}, {vr(FR+4*j,4)}, {vr(B1+4*j,4)}, {"0" if j==0 else vr(AR,16)}')
        a(f'{M32} {vr(AI,16)}, {vr(FR+4*j,4)}, {vr(B1+16+4*j,4)}, {"0" if j==0 else vr(AI,16)}')
    a('s_waitcnt vmcnt(6)')
    for r in range(10):
        a(f'v_mul_f32 v{FA+r}, v{AR+r}, v{TW+r}')
        a(f'v_mul_f32 v{FB+r}, v{AR+r}, v{TW+10+r}')
    for r in range(10):
        a(f'v_fma_f32 v{FA+r}, -v{AI+r}, v{TW+10+r}, v{FA+r}')
        a(f'v_fmac_f32 v{FB+r}, v{AI+r}, v{TW+r}')
        a(f'v_cvt_pk_bf16_f32 v{PK+r}, v{FA+r}, v{FB+r}')
    a('s_waitcnt vmcnt(0)')
    for j in range(3):
        a(f'{M32} {vr(AR,16)}, {vr(A2+4*j,4)}, {vr(PK+4*j,4)}, {"0" if j==0 else vr(AR,16)}')
        a(f'{M32} {vr(AI,16)}, {vr(A2+12+4*j,4)}, {vr(PK+4*j,4)}, {"0" if j==0 else vr(AI,16)}')
    for r in range(10):
        a(f'v_cvt_pk_bf16_f32 v{FA+r}, v{AR+r}, v{AI+r}')
        a(f'ds_write_b32 v157, v{FA+r} offset:{512*r}')
    a('s_waitcnt lgkmcnt(0)')
    st.stamp()
    a('s_barrier')
    for i in range(3):
        a(f'ds_read_b128 {vr(FR+4*i,4)}, v{212+i}')
    accs = [AR, AI, 36]
    for i in range(3):
        a(f's_waitcnt lgkmcnt({2-i})')
        a(f'{M32} {vr(accs[i],16)}, {vr(A3,4)}, {vr(FR+4*i,4)}, 0')
    for i in range(3):
        for q in range(4):
            a(f'v_cvt_pk_bf16_f32 v{PK+4*i+q}, v{accs[i]+2*q}, v{accs[i]+2*q+1}')
        a(f'buffer_store_dwordx4 {vr(PK+4*i,4)}, v{215+i}, s[16:19], s29 offen')
    st.end()
    a('L1_end:')
    a('s_endpgm')
    return dict(name='k1_kernel', code=a.finalize(), grid=256, block=256, lds=T2 + 10240, vgpr=220, agpr=0)

def k2():
    a = Asm()
    D, W, MR, MI, TR, TI = 4, 12, 20, 24, 28, 32
    RE, IM, T, P = 36, 44, 52, 68
    a('s_cmp_ge_u32 s2, 321')
    a('s_cbranch_scc1 L2_end')
    st = St(a, 2)
    a(f's_load_dwordx2 s[4:5], s[0:1], {A_WS}')
    srd_tab(a, 20, 'k2')
    a('v_and_b32 v1, 63, v0')
    a('v_lshrrev_b32 v2, 6, v0')
    a('v_readfirstlane_b32 s3, v2')
    a('v_lshlrev_b32 v2, 4, v1')
    load_tab(a, MR, 16, 'K2', 2, 20, 28)
    a('s_and_b32 s24, s2, 7')
    a('s_mul_i32 s24, s24, 40')
    a('s_lshr_b32 s25, s2, 3')
    a('s_add_u32 s24, s24, s25')
    a('s_cmp_eq_u32 s2, 320')
    a('s_cselect_b32 s24, 320, s24')
    a('s_cselect_b32 s30, 0x3f3504f3, 1.0')
    a('s_cmp_eq_u32 s24, 0')
    a('s_cselect_b32 s30, 0x3f3504f3, s30')
    a('s_lshl_b32 s25, s24, 13')
    a('s_lshr_b32 s26, s3, 1')
    a('s_and_b32 s27, s3, 1')
    a('s_lshl_b32 s29, s26, 12')
    a('s_add_u32 s29, s29, s25')
    a('s_lshl_b32 s31, s27, 3')
    a('s_add_u32 s29, s29, s31')
    a('s_lshl_b32 s31, s3, 11')
    a('s_add_u32 s25, s25, s31')
    a('s_waitcnt lgkmcnt(0)')
    srd(a, 8, 4, VV_SZ, VV)
    srd(a, 12, 4, WW_SZ, WW)
    srd(a, 16, 4, VP_SZ, VP)
    for pr, i in enumerate((0, 2, 1, 3)):
        a(f'buffer_load_dwordx2 {vr(D+2*pr,2)}, v2, s[8:11], s29 offen offset:{1024*i}')
    a(f'buffer_load_dwordx4 {vr(W,4)}, v2, s[12:15], s25 offen')
    a(f'buffer_load_dwordx4 {vr(W+4,4)}, v2, s[12:15], s25 offen offset:1024')
    a('v_lshrrev_b32 v3, 4, v1')
    a('v_lshlrev_b32 v3, 6, v3')
    a('v_and_b32 v76, 15, v1')
    a('v_add_u32 v3, v3, v76')
    a(f'v_mul_u32_u24 v3, {VPS}, v3')
    a('s_lshl_b32 s32, s24, 5')
    a('s_lshl_b32 s31, s3, 3')
    a('s_add_u32 s32, s32, s31')
    for r in range(1, 4): a(f's_add_u32 s{32+r}, s32, {r*16*VPS}')
    a('s_mov_b32 s27, 0xffff0000')
    a('s_waitcnt vmcnt(6)')
    for i in range(8): a(f'v_mul_f32 v{TR+i}, s30, v{TR+i}')
    a('s_waitcnt vmcnt(2)')
    st.stamp()
    a(f'v_swap_b32 v{D+1}, v{D+4}')
    a(f'v_swap_b32 v{D+3}, v{D+6}')
    def mm(dataA, src, outX, outY):
        for jb in range(2):
            d = vr(src + 4*jb, 4)
            for out, m in ((outX, MR), (outY, MI)):
                o = vr(out + 4*jb, 4)
                a(f'{M16} {o}, {d}, {vr(m,4)}, 0' if dataA else f'{M16} {o}, {vr(m,4)}, {d}, 0')
    def cmul(cr, ci, conj, swap):
        for jb in range(2):
            for r in range(4):
                k = 4*jb + r
                a(f'v_mul_f32 v{T+k}, v{RE+k}, v{cr(jb,r)}')
                a(f'v_mul_f32 v{T+8+k}, v{IM+k}, v{cr(jb,r)}')
            for r in range(4):
                k = 4*jb + r
                a(f'v_fma_f32 v{T+k}, {"" if conj else "-"}v{IM+k}, v{ci(jb,r)}, v{T+k}')
                a(f'v_fma_f32 v{T+8+k}, {"-" if conj else ""}v{RE+k}, v{ci(jb,r)}, v{T+8+k}')
                if swap: a(f'v_cvt_pk_bf16_f32 v{P+k}, v{T+8+k}, v{T+k}')
                else: a(f'v_cvt_pk_bf16_f32 v{P+k}, v{T+k}, v{T+8+k}')
    mm(True, D, RE, IM)
    a('s_waitcnt vmcnt(0)')
    st.stamp()
    for k in range(8):
        a(f'v_lshlrev_b32 v{76+k}, 16, v{W+k}')
        a(f'v_and_b32 v{W+k}, s27, v{W+k}')
    cmul(lambda j, r: TR+r, lambda j, r: TI+r, False, False)
    mm(False, P, RE, IM)
    cmul(lambda j, r: 76+4*j+r, lambda j, r: W+4*j+r, False, True)
    mm(True, P, IM, RE)
    cmul(lambda j, r: TR+r, lambda j, r: TI+r, True, True)
    mm(False, P, IM, RE)
    st.stamp()
    for r in range(4):
        a(f'v_cvt_pk_bf16_f32 v{T+2*r}, v{RE+r}, v{IM+r}')
        a(f'v_cvt_pk_bf16_f32 v{T+2*r+1}, v{RE+4+r}, v{IM+4+r}')
        a(f'buffer_store_dwordx2 {vr(T+2*r,2)}, v3, s[16:19], s{32+r} offen')
    st.end()
    a('L2_end:')
    a('s_endpgm')
    return dict(name='k2_kernel', code=a.finalize(), grid=321, block=256, lds=0, vgpr=84, agpr=0)

def k3():
    a = Asm()
    XA, XB, GA, CB, SB, B1, MA, TW, A3C, A3 = 4, 10, 16, 26, 36, 48, 80, 104, 136, 140
    DV, AR, AI, A3X, PK, FA, FB, T = 144, 160, 176, 192, 208, 224, 234, 244
    a('s_cmp_ge_u32 s2, 256')
    a('s_cbranch_scc1 L3_end')
    st = St(a, 3)
    a(f's_load_dwordx2 s[4:5], s[0:1], {A_WS}')
    a(f's_load_dwordx2 s[6:7], s[0:1], {A_X}')
    srd_tab(a, 20, 'k3')
    a('v_and_b32 v1, 63, v0')
    a('v_lshrrev_b32 v2, 6, v0')
    a('v_readfirstlane_b32 s3, v2')
    a('v_lshlrev_b32 v9, 4, v1')
    load_tab(a, A3C, 4, 'a3i', 9, 20, 28)
    a('s_and_b32 s24, s2, 7')
    a('s_lshl_b32 s24, s24, 5')
    a('s_lshr_b32 s25, s2, 3')
    a('s_add_u32 s24, s24, s25')
    a('s_lshl_b32 s25, s3, 8')
    a('s_add_u32 s25, s25, s24')
    a('s_mul_i32 s25, s25, 1280')
    a(f's_add_u32 s26, s25, {1024*1280}')
    a('v_and_b32 v2, 31, v1')
    a('v_lshrrev_b32 v3, 5, v1')
    a('v_lshlrev_b32 v15, 5, v2')
    a('v_lshl_add_u32 v15, v3, 4, v15')
    a(f's_mul_i32 s29, s24, {VPS}')
    a('s_lshl_b32 s30, s3, 10')
    a('s_add_u32 s29, s29, s30')
    a('s_add_u32 s30, s29, 4096')
    a('s_add_u32 s31, s29, 8192')
    a('v_lshl_add_u32 v46, v2, 1, v3')
    a('v_mul_u32_u24 v47, 20, v46')
    a('v_lshlrev_b32 v156, 1, v47')
    a('s_mov_b32 s27, 0xffff0000')
    a('s_waitcnt lgkmcnt(0)')
    srd(a, 16, 4, VP_SZ, VP)
    srd(a, 8, 6, 2048 * 1280)
    srd(a, 12, 4, MOD_SZ, MOD + 2 * 2560)
    srd(a, 40, 4, X1_SZ, X1)
    srd(a, 44, 4, H2_SZ, H2)
    a(f's_mov_b32 s14, {4*2560}')
    for i in range(3):
        a(f'buffer_load_dwordx4 {vr(DV+4*i,4)}, v15, s[16:19], s{29+i} offen')
    load_tab(a, MA, 24, 'A', 9, 20, 28)
    load_tab(a, TW, 32, 'tw3', 9, 20, 28)
    load_tab(a, B1, 32, 'B1', 9, 20, 28)
    a(f'buffer_load_dwordx4 {vr(XA,4)}, v47, s[8:11], s25 offen')
    a(f'buffer_load_dword v{XA+4}, v47, s[8:11], s25 offen offset:16')
    a(f'buffer_load_dwordx4 {vr(XB,4)}, v47, s[8:11], s26 offen')
    a(f'buffer_load_dword v{XB+4}, v47, s[8:11], s26 offen offset:16')
    load40(a, GA, 156, 12, 0)
    load40(a, SB, 156, 12, 2560)
    a('v_add_u32 v156, 5120, v156')
    load40(a, CB, 156, 12, 0)
    a('s_mul_i32 s32, s3, 3584')
    a('v_mul_u32_u24 v157, 112, v2')
    a('v_lshlrev_b32 v158, 3, v3')
    a('v_sub_u32 v158, 88, v158')
    a('v_cmp_eq_u32 vcc, 32, v1')
    a('v_mov_b32 v159, 96')
    a('v_cndmask_b32 v158, v158, v159, vcc')
    a('v_add3_u32 v158, v158, v157, s32')
    a(f'v_mov_b32 v{T}, 0')
    a(f'v_mov_b32 v{T+1}, 0')
    a(f'ds_write_b64 v158, {vr(T,2)}')
    a('s_lshl_b32 s33, s3, 5')
    a('v_cmp_eq_u32 vcc, 0, v3')
    a('v_add_u32 v159, 96, v157')
    for i in range(3):
        a(f'v_add_u32 v{T+2}, s33, v2')
        if i: a(f'v_add_u32 v{T+2}, {128*i}, v{T+2}')
        a(f'v_sub_u32 v{T+3}, 640, v{T+2}')
        a(f'v_cndmask_b32 v{T+3}, v{T+3}, v{T+2}, vcc')
        a(f'v_and_b32 v{T+4}, 31, v{T+3}')
        a(f'v_mul_u32_u24 v{T+4}, 112, v{T+4}')
        a(f'v_lshrrev_b32 v{T+3}, 5, v{T+3}')
        a(f'v_lshl_add_u32 v{252+i}, v{T+3}, 2, v{T+4}')
        if i == 2:
            a(f'v_lshl_add_u32 v{T+3}, v{T+2}, 1, v3')
            a(f'v_mov_b32 v{T+4}, 641')
            a(f'v_cmp_eq_u32 s[34:35], v{T+4}, v{T+3}')
            a(f'v_mov_b32 v{T+5}, 84')
            a(f'v_cndmask_b32 v254, v254, v{T+5}, s[34:35]')
            a(f'v_cmp_lt_u32 s[34:35], v{T+4}, v{T+3}')
            a(f'v_cndmask_b32 v254, v254, v159, s[34:35]')
    a('v_lshl_add_u32 v255, v3, 4, v157')
    a('v_add_u32 v255, s32, v255')
    a('s_waitcnt vmcnt(38)')
    st.stamp()
    a(f'v_cvt_f32_u32 v{T}, s24')
    a(f'v_mul_f32 v{T}, 0x3a000000, v{T}')
    a(f'v_add_f32 v{T}, v{T}, v{A3C}')
    a(f'v_fma_f32 v{T+1}, v{A3C+1}, v{T}, v{A3C+3}')
    for i in range(4):
        if i & 1: a(f'v_sub_f32 v{T+2}, v{T+1}, v{A3C+2}')
        else: a(f'v_add_f32 v{T+2}, v{T+1}, v{A3C+2}')
        a(f'v_cos_f32 v{T+3}, v{T+2}')
        a(f'v_sin_f32 v{T+4}, v{T+2}')
        if i < 3: a(f'v_add_f32 v{T+1}, v{T+1}, v{T}')
        a(f'v_cvt_pk_bf16_f32 v{A3+i}, v{T+3}, -v{T+4}')
    accs = [AR, AI, A3X]
    for i in range(3):
        a(f's_waitcnt vmcnt({37-i})')
        a(f'{M32} {vr(accs[i],16)}, {vr(A3,4)}, {vr(DV+4*i,4)}, 0')
    for i in range(3):
        for p in range(4):
            a(f'v_cvt_pk_bf16_f32 v{PK+4*i+p}, v{accs[i]+2*p}, v{accs[i]+2*p+1}')
            a(f'ds_write_b32 v{252+i}, v{PK+4*i+p} offset:{3584*p}')
    a('s_waitcnt lgkmcnt(0)')
    a('s_barrier')
    for j in range(3):
        a(f'ds_read_b128 {vr(DV+4*j,4)}, v255 offset:{32*j}')
    a('s_waitcnt vmcnt(29)')
    st.stamp()
    for j in range(3):
        a(f's_waitcnt lgkmcnt({2-j})')
        a(f'{M32} {vr(AR,16)}, {vr(DV+4*j,4)}, {vr(MA+4*j,4)}, {"0" if j==0 else vr(AR,16)}')
        a(f'{M32} {vr(AI,16)}, {vr(DV+4*j,4)}, {vr(MA+12+4*j,4)}, {"0" if j==0 else vr(AI,16)}')
    a('s_waitcnt vmcnt(21)')
    st.stamp()
    for r in range(16):
        a(f'v_mul_f32 v{A3X+r}, v{AR+r}, v{TW+r}')
        a(f'v_mul_f32 v{MA+r}, v{AR+r}, v{TW+16+r}')
    for r in range(16):
        a(f'v_fma_f32 v{A3X+r}, -v{AI+r}, v{TW+16+r}, v{A3X+r}')
        a(f'v_fmac_f32 v{MA+r}, v{AI+r}, v{TW+r}')
        a(f'v_cvt_pk_bf16_f32 v{PK+r}, v{MA+r}, v{A3X+r}')
    a('s_waitcnt vmcnt(13)')
    st.stamp()
    for j in range(4):
        a(f'{M32} {vr(AI,16)}, {vr(PK+4*j,4)}, {vr(B1+4*j,4)}, {"0" if j==0 else vr(AI,16)}')
        a(f'{M32} {vr(AR,16)}, {vr(PK+4*j,4)}, {vr(B1+16+4*j,4)}, {"0" if j==0 else vr(AR,16)}')
    a('s_waitcnt vmcnt(6)')
    unpack10(a, FA, XA, XA+4, 27)
    unpack10(a, FB, XB, XB+4, 27)
    a('s_lshr_b32 s32, s24, 4')
    a('s_mul_i32 s32, s32, 163840')
    a('s_bfe_u32 s33, s24, 0x30001')
    a('s_lshl_b32 s33, s33, 10')
    a('s_add_u32 s32, s32, s33')
    a('s_and_b32 s33, s24, 1')
    a('s_lshl_b32 s33, s33, 7')
    a('s_add_u32 s32, s32, s33')
    a('s_lshl_b32 s33, s3, 4')
    a('s_add_u32 s32, s32, s33')
    a('v_lshrrev_b32 v157, 2, v46')
    a('v_lshlrev_b32 v157, 13, v157')
    a('v_and_b32 v159, 3, v46')
    a('v_lshl_add_u32 v157, v159, 8, v157')
    a('v_lshrrev_b32 v158, 4, v46')
    a('v_lshlrev_b32 v158, 13, v158')
    a('v_lshl_add_u32 v158, v159, 2, v158')
    a('v_bfe_u32 v159, v46, 2, 2')
    a('v_lshl_add_u32 v158, v159, 8, v158')
    a(f'v_add_u32 v158, {16*8192}, v158')
    for i in range(10):
        a(f'v_fmac_f32 v{FA+i}, v{AR+i}, v{GA+i}')
        a(f'v_fmac_f32 v{FB+i}, v{AI+i}, v{GA+i}')
    for i in range(5):
        a(f'v_cvt_pk_bf16_f32 v{XA+i}, v{FA+2*i}, v{FA+2*i+1}')
        a(f'v_cvt_pk_bf16_f32 v{XB+i}, v{FB+2*i}, v{FB+2*i+1}')
    a(f'buffer_store_dwordx4 {vr(XA,4)}, v47, s[40:43], s25 offen')
    a(f'buffer_store_dword v{XA+4}, v47, s[40:43], s25 offen offset:16')
    a(f'buffer_store_dwordx4 {vr(XB,4)}, v47, s[40:43], s26 offen')
    a(f'buffer_store_dword v{XB+4}, v47, s[40:43], s26 offen offset:16')
    unpack10(a, FA, XA, XA+4, 27)
    unpack10(a, FB, XB, XB+4, 27)
    ln_stats(a, FA, FB, T, 48)
    a('s_waitcnt vmcnt(4)')
    st.stamp()
    for i in range(10):
        a(f'v_fma_f32 v{FA+i}, v{FA+i}, v{T}, v{T+1}')
        a(f'v_fma_f32 v{FB+i}, v{FB+i}, v{T+2}, v{T+3}')
        a(f'v_fma_f32 v{FA+i}, v{FA+i}, v{CB+i}, v{SB+i}')
        a(f'v_fma_f32 v{FB+i}, v{FB+i}, v{CB+i}, v{SB+i}')
    for i in range(5):
        a(f'v_cvt_pk_bf16_f32 v{PK+i}, v{FA+2*i}, v{FA+2*i+1}')
        a(f'v_cvt_pk_bf16_f32 v{PK+8+i}, v{FB+2*i}, v{FB+2*i+1}')
    a(f'buffer_store_dwordx4 {vr(PK,4)}, v157, s[44:47], s32 offen')
    a(f'buffer_store_dword v{PK+4}, v158, s[44:47], s32 offen')
    a(f'buffer_store_dwordx4 {vr(PK+8,4)}, v157, s[44:47], s32 offen offset:64')
    a(f'buffer_store_dword v{PK+12}, v158, s[44:47], s32 offen offset:64')
    st.end()
    a('L3_end:')
    a('s_endpgm')
    return dict(name='k3_kernel', code=a.finalize(), grid=256, block=256, lds=4*3584, vgpr=256, agpr=0)

def g1():
    a = Asm()
    ACC, FR = 16, 112
    PRE = 12
    a('s_cmp_ge_u32 s2, 256')
    a('s_cbranch_scc1 L4_end')
    st = St(a, 4)
    a(f's_load_dwordx2 s[4:5], s[0:1], {A_WS}')
    a('v_and_b32 v1, 63, v0')
    a('v_lshrrev_b32 v2, 6, v0')
    a('v_readfirstlane_b32 s3, v2')
    a('v_lshlrev_b32 v2, 4, v1')
    a('s_bfe_u32 s24, s2, 0x20001')
    a('s_lshl_b32 s24, s24, 2')
    a('s_lshr_b32 s25, s2, 6')
    a('s_add_u32 s24, s24, s25')
    a('s_and_b32 s25, s2, 1')
    a('s_lshl_b32 s25, s25, 3')
    a('s_bfe_u32 s26, s2, 0x30003')
    a('s_add_u32 s25, s25, s26')
    a('s_lshl_b32 s26, s25, 2')
    a('s_add_u32 s26, s26, s3')
    a('s_mul_i32 s27, s26, 61440')
    a('s_mul_i32 s28, s24, 163840')
    a('s_lshl_b32 s29, s3, 11')
    a('s_add_u32 s28, s28, s29')
    a('s_waitcnt lgkmcnt(0)')
    srd(a, 8, 4, WGU_SZ, WGU)
    srd(a, 12, 4, H2_SZ, H2)
    srd(a, 16, 4, HH_SZ, HH)
    def issue(j):
        a('s_mov_b32 m0, s29')
        a('buffer_load_dwordx4 v2, s[12:15], s28 offen lds')
        a('buffer_load_dwordx4 v2, s[12:15], s28 offen offset:1024 lds')
        for t in range(3):
            a(f'buffer_load_dwordx4 {ar(12*j+4*t,4)}, v2, s[8:11], s27 offen offset:{1024*t}')
        a('s_add_u32 s28, s28, 8192')
        a('s_add_u32 s29, s29, 8192')
        a('s_add_u32 s27, s27, 3072')
    for j in range(PRE): issue(j)
    st.stamp()
    a('v_add_u32 v3, 0x10000, v2')
    a('v_add_u32 v4, 0x20000, v2')
    def reads(j, nts):
        base = j * 8192
        reg = [2, 3, 4][base >> 16]
        for nt in nts:
            a(f'ds_read_b128 {vr(FR+32*(j&1)+4*nt,4)}, v{reg} offset:{(base & 0xffff) + nt*1024}')
    def outstanding_after(j, issued):
        return 5 * (issued - 1 - j)
    issued = PRE
    a(f's_waitcnt vmcnt({outstanding_after(0, issued)})')
    a('s_barrier')
    reads(0, range(8))
    st.stamp()
    for j in range(20):
        if j + 1 < 20:
            a(f's_waitcnt vmcnt({outstanding_after(j+1, issued)})')
            a('s_barrier')
        a('s_waitcnt lgkmcnt(0)')
        if j in (4, 8, 12, 16): st.stamp()
        for nt in range(8):
            for t in range(3):
                acc = vr(ACC + 12*nt + 4*t, 4)
                a(f'{M16} {acc}, {ar(12*j+4*t,4)}, {vr(FR+32*(j&1)+4*nt,4)}, {"0" if j==0 else acc}')
            if j + 1 < 20: reads(j + 1, [nt])
            if nt == 1 and issued < 20:
                issue(issued); issued += 1
    st.stamp()
    a('s_mul_i32 s30, s26, 3')
    for e in range(3):
        a(f's_add_u32 s31, s30, {e}')
        a(f's_lshr_b32 s{32+e}, s31, 2')
        a(f's_lshl_b32 s{32+e}, s{32+e}, 12')
        a('s_and_b32 s31, s31, 3')
        a('s_lshl_b32 s31, s31, 8')
        a(f's_add_u32 s{32+e}, s{32+e}, s31')
    a('v_and_b32 v5, 15, v1')
    a('v_lshlrev_b32 v5, 4, v5')
    a('v_lshrrev_b32 v6, 4, v1')
    a('v_lshl_add_u32 v8, v6, 2, v5')
    a('v_add_u32 v8, s34, v8')
    a('v_and_b32 v7, 1, v6')
    a('v_lshl_add_u32 v7, v7, 3, v5')
    a('v_mov_b32 v9, s32')
    a('v_mov_b32 v10, s33')
    a('v_cmp_gt_u32 vcc, 32, v1')
    a('v_cndmask_b32 v9, v10, v9, vcc')
    a('v_add_u32 v7, v7, v9')
    a(f's_mul_i32 s35, s24, {2*196608}')
    a('s_add_u32 s36, s35, 196608')
    for nt in range(8):
        b = ACC + 12 * nt
        for r in range(4): a(f'v_max_f32 v{b+r}, 0, v{b+r}')
        for r in range(2): a(f'v_max_f32 v{b+8+r}, 0, v{b+8+r}')
        for r in range(4): a(f'v_mul_f32 v{b+r}, v{b+r}, v{b+4+r}')
        for r in range(2): a(f'v_mul_f32 v{b+8+r}, v{b+8+r}, v{b+10+r}')
        a(f'v_cvt_pk_bf16_f32 v{b+4}, v{b}, v{b+1}')
        a(f'v_cvt_pk_bf16_f32 v{b+5}, v{b+2}, v{b+3}')
        a(f'v_cvt_pk_bf16_f32 v{b+6}, v{b+8}, v{b+9}')
        a(f'buffer_store_dwordx2 {vr(b+4,2)}, v7, s[16:19], s{35+(nt>>2)} offen offset:{1024*(nt&3)}')
        a(f'buffer_store_dword v{b+6}, v8, s[16:19], s{35+(nt>>2)} offen offset:{1024*(nt&3)}')
    st.end()
    a('L4_end:')
    a('s_endpgm')
    return dict(name='g1_kernel', code=a.finalize(), grid=256, block=256, lds=163840, vgpr=176, agpr=240)

def g2():
    a = Asm()
    XR, GB, ACC, HF, RD = 12, 24, 44, 84, 84
    a('s_cmp_ge_u32 s2, 256')
    a('s_cbranch_scc1 L5_end')
    st = St(a, 5)
    a(f's_load_dwordx2 s[4:5], s[0:1], {A_WS}')
    a(f's_load_dwordx2 s[6:7], s[0:1], {A_OUT}')
    a('v_and_b32 v1, 63, v0')
    a('v_lshrrev_b32 v2, 6, v0')
    a('v_readfirstlane_b32 s3, v2')
    a('v_lshlrev_b32 v2, 4, v1')
    a('s_and_b32 s24, s2, 7')
    a('s_lshl_b32 s24, s24, 2')
    a('s_lshr_b32 s25, s2, 6')
    a('s_add_u32 s24, s24, s25')
    a('s_bfe_u32 s25, s2, 0x30003')
    a('s_lshl_b32 s26, s25, 2')
    a('s_add_u32 s26, s26, s3')
    a('s_mul_i32 s27, s26, 61440')
    a('s_mul_i32 s28, s24, 196608')
    a('s_mul_i32 s29, s3, 49152')
    a('s_add_u32 s28, s28, s29')
    for i in range(4):
        a(f's_add_u32 s{40+i}, s3, {i+1}')
        a(f's_and_b32 s{40+i}, s{40+i}, 3')
        a(f's_lshl_b32 s{40+i}, s{40+i}, 10')
    a('s_waitcnt lgkmcnt(0)')
    srd(a, 8, 4, WD_SZ, WD)
    srd(a, 12, 4, HH_SZ, HH)
    srd(a, 16, 6, 2048 * 1280)
    srd(a, 32, 4, X1_SZ, X1)
    srd(a, 36, 4, 2560, MOD + 5 * 2560)
    def hload(i, j):
        if j == 0: a(f's_add_u32 s30, s28, s{40+i}')
        a(f'buffer_load_dwordx4 {vr(HF+48*(i%3)+4*j,4)}, v2, s[12:15], s30 offen')
        if j < 11: a('s_add_u32 s30, s30, 4096')
    for j in range(12):
        hload(0, j)
        for t in range(5):
            a(f'buffer_load_dwordx4 {ar(20*j+4*t,4)}, v2, s[8:11], s27 offen offset:{1024*(t&3)}')
            if t == 3: a('s_add_u32 s27, s27, 4096')
            if t == 4: a('s_add_u32 s27, s27, 1024')
    a('v_and_b32 v5, 7, v1')
    a('v_lshlrev_b32 v5, 8, v5')
    a('v_bfe_u32 v6, v1, 3, 1')
    a('v_add_u32 v5, v5, v6')
    a('s_lshl_b32 s31, s24, 3')
    a('s_lshl_b32 s44, s3, 1')
    a('s_add_u32 s31, s31, s44')
    a('v_add_u32 v5, s31, v5')
    a('v_mul_u32_u24 v5, 1280, v5')
    a('v_lshrrev_b32 v6, 4, v1')
    a('v_mul_u32_u24 v7, 40, v6')
    a('s_mul_i32 s44, s25, 160')
    a('v_add3_u32 v5, v5, v7, s44')
    a('v_lshlrev_b32 v7, 1, v7')
    a('s_lshl_b32 s44, s44, 1')
    a('v_add_u32 v7, s44, v7')
    for i in range(3):
        a(f's_mul_i32 s44, s{40+i}, 15')
        a(f's_add_u32 s44, s44, {i*5120}')
        a(f'v_add_u32 v{8+i}, s44, v2')
    a('s_mul_i32 s44, s3, 15360')
    a('v_add_u32 v11, s44, v2')
    a('s_mov_b32 s45, 0xffff0000')
    st.stamp()
    for i in range(4):
        acc = ACC + 20 * (i & 1)
        for j in range(12):
            if i == 0:
                a(f's_waitcnt vmcnt({min(63, (11-j)*6 + j)})')
            elif i == 1:
                a(f's_waitcnt vmcnt({(11-j) + j})')
            elif i == 2:
                a(f's_waitcnt vmcnt({(11-j) + 8 + j})')
            else:
                a(f's_waitcnt vmcnt({11-j})')
            for t in range(5):
                c = vr(acc + 4*t, 4)
                a(f'{M16} {c}, {ar(20*j+4*t,4)}, {vr(HF+48*(i%3)+4*j,4)}, {"0" if j==0 else c}')
            if i < 3: hload(i + 1, j)
            if i > 0 and 2 <= j < 7:
                pa = ACC + 20 * ((i - 1) & 1)
                a(f'ds_write_b128 v{8+i-1}, {vr(pa+4*(j-2),4)} offset:{1024*(j-2)}')
        st.stamp()
        if i == 1:
            load40(a, XR, 5, 32, 0)
            for q in range(5):
                a(f'buffer_load_dwordx4 {vr(GB+4*q,4)}, v7, s[36:39], 0 offen offset:{16*q}')
    a('s_waitcnt lgkmcnt(0)')
    a('s_barrier')
    RD = HF + 48
    for q in range(15):
        a(f'ds_read_b128 {vr(RD+4*q,4)}, v11 offset:{1024*q}')
    acc = ACC + 20
    U = ACC
    for i in range(10):
        a(f'v_lshlrev_b32 v{U+2*i}, 16, v{XR+i}')
        a(f'v_and_b32 v{U+2*i+1}, s45, v{XR+i}')
    for s in range(3):
        a(f's_waitcnt lgkmcnt({10-5*s})')
        for k in range(20): a(f'v_add_f32 v{acc+k}, v{acc+k}, v{RD+20*s+k}')
    for k in range(20): a(f'v_fmac_f32 v{U+k}, v{acc+k}, v{GB+k}')
    for i in range(10): a(f'v_cvt_pk_bf16_f32 v{XR+i}, v{U+2*i}, v{U+2*i+1}')
    a(f'buffer_store_dwordx4 {vr(XR,4)}, v5, s[16:19], 0 offen')
    a(f'buffer_store_dwordx4 {vr(XR+4,4)}, v5, s[16:19], 0 offen offset:16')
    a(f'buffer_store_dwordx2 {vr(XR+8,2)}, v5, s[16:19], 0 offen offset:32')
    st.end()
    a('L5_end:')
    a('s_endpgm')
    return dict(name='g2_kernel', code=a.finalize(), grid=256, block=256, lds=4*15360, vgpr=228, agpr=240)

def emit(kernels, path):
    hdr = open('adaLN_cond__spectral_gfnet__glu_gated_reglu__prompt.s.ref').read().split('\n')
    s = '\n'.join(l for l in hdr if l.startswith(';') and '@launch' not in l and 'Override' not in l and 'grid=ceil' not in l) + '\n'
    for k in kernels:
        s += f"; @launch kernel={k['name']} grid=({k['grid']},1,1) block=({k['block']},1,1) lds={k['lds']}\n"
    s += '.amdgcn_target "amdgcn-amd-amdhsa--gfx950"\n.text\n'
    seen = []
    for k in kernels:
        if k['name'] in seen: continue
        seen.append(k['name'])
        s += f".globl {k['name']}\n.p2align 8\n.type {k['name']},@function\n{k['name']}:\n{k['code']}"
    s += '.p2align 8\n.type tab_data,@object\ntab_data:\n'
    for i in range(0, TAB.size, 8):
        s += '.long ' + ','.join(f'0x{x:x}' for x in TAB[i:i+8]) + '\n'
    s += f'.size tab_data, {TAB_SZ}\n'
    s += '.section .rodata,"a"\n'
    seen = []
    for k in kernels:
        if k['name'] in seen: continue
        seen.append(k['name'])
        acc = (k['vgpr'] + 3) // 4 * 4
        nfv = acc + k['agpr'] if k['agpr'] else k['vgpr']
        s += f""".p2align 6
.amdhsa_kernel {k['name']}
  .amdhsa_next_free_vgpr {nfv}
  .amdhsa_next_free_sgpr {k.get('sgpr', 102 if INSTR else 64)}
  .amdhsa_accum_offset {acc}
  .amdhsa_group_segment_fixed_size 0
  .amdhsa_kernarg_size 96
  .amdhsa_user_sgpr_count 2
  .amdhsa_user_sgpr_kernarg_segment_ptr 1
  .amdhsa_system_sgpr_workgroup_id_x 1
.end_amdhsa_kernel
"""
    open(path, 'w').write(s)

if __name__ == '__main__':
    out = sys.argv[1] if len(sys.argv) > 1 else 'adaLN_cond__spectral_gfnet__glu_gated_reglu__prompt.s'
    emit([k0(), k1(), k2(), k3(), g1(), g2()], out)
```

```python
import sys
sys.path.insert(0, 'gen')
from gen1 import *
def empty():
    a = Asm(); a('s_endpgm')
    return dict(name='e_kernel', code=a.finalize(), grid=256, block=256, lds=0, vgpr=8, agpr=0)
def probe(name, bufs):
    a = Asm()
    a('s_cmp_ge_u32 s2, 256')
    a(f's_cbranch_scc1 Lend_{name}')
    for i, (ka, off, sz) in enumerate(bufs):
        a(f's_load_dwordx2 s[{4+2*i}:{5+2*i}], s[0:1], {ka}')
    a('v_lshlrev_b32 v1, 7, v0')
    a('s_waitcnt lgkmcnt(0)')
    r = 4
    for i, (ka, off, sz) in enumerate(bufs):
        srd(a, 40, 4 + 2 * i, sz, off)
        per = -(-sz // 256 // 128) * 128
        a(f's_mul_i32 s3, s2, {per}')
        n = -(-per // 32768)
        for j in range(n):
            if per - j * 32768 < 32768:
                a(f'v_cmp_gt_u32 vcc, {per - j*32768}, v1')
                a('s_and_saveexec_b64 s[44:45], vcc')
                a(f's_cbranch_execz Lsk_{name}_{i}')
            a(f'buffer_load_dword v{r}, v1, s[40:43], s3 offen'); r += 1
            a('s_add_u32 s3, s3, 32768')
        a(f'Lsk_{name}_{i}:')
        a('s_mov_b64 exec, -1')
    a('s_waitcnt vmcnt(0)')
    a(f'Lend_{name}:')
    a('s_endpgm')
    return dict(name=name + '_kernel', code=a.finalize(), grid=256, block=256, lds=0, vgpr=32, agpr=0)
ks = [k0(), k1(), k2(), k3(), g1(), g2()]
e = empty()
allin = [(0, 0, 2621440), (8, 0, 2048*642), (16, 0, 2048*642), (24, 0, 2621440), (32, 0, 640*3072), (40, 0, 640*3072), (48, 0, 640*3072), (64, 0, 640*7680)]
P = probe('pall', allin)
emit([P] + ks, 'pb_b.s')
emit([P, P] + ks, 'pb_c.s')
emit([e] + ks, 'pb_d.s')
emit([e, probe('pws', [(88, 0x4000000, 16 << 20)])] + ks, 'pb_e.s')
emit([e, probe('pbx', [(24, 0, 2621440)])] + ks, 'pb_f.s')
emit([e, P] + ks, 'pb_g.s')
```

```python
import re

def _expand(tok):
    tok = tok.strip()
    neg = tok.startswith('-')
    if neg: tok = tok[1:]
    m = re.fullmatch(r'abs\((.*)\)', tok)
    if m: tok = m.group(1)
    m = re.fullmatch(r'\|(.*)\|', tok)
    if m: tok = m.group(1)
    m = re.fullmatch(r'([vas])(\d+)', tok)
    if m: return [(m.group(1), int(m.group(2)))]
    m = re.fullmatch(r'([vas])\[(\d+):(\d+)\]', tok)
    if m: return [(m.group(1), i) for i in range(int(m.group(2)), int(m.group(3)) + 1)]
    if tok in ('vcc', 'vcc_lo', 'vcc_hi'): return [('s', 'vcc')]
    if tok in ('exec', 'exec_lo', 'exec_hi'): return [('s', 'exec')]
    if tok == 'm0': return [('s', 'm0')]
    return []

TRANS = ('v_exp_f32', 'v_log_f32', 'v_rcp_f32', 'v_rsq_f32', 'v_sqrt_f32', 'v_sin_f32', 'v_cos_f32', 'v_rcp_iflag_f32')

class Ins:
    def __init__(self, text):
        self.text = text
        t = text.split(';')[0].strip()
        self.label = t.endswith(':')
        self.directive = t.startswith('.')
        self.op = ''
        self.w = set(); self.r = set()
        self.kind = 'other'
        self.dpp = False
        self.srcC = set(); self.srcAB = set()
        self.passes = 0
        self.wide_store_data = set()
        if self.label or self.directive or not t:
            self.kind = 'none'; return
        parts = t.split(None, 1)
        op = parts[0]; self.op = op
        rest = parts[1] if len(parts) > 1 else ''
        ops = [o.strip() for o in re.split(r',(?![^\[]*\])', rest)] if rest else []
        mods = ''
        if ops:
            last = ops[-1].split(None, 1)
            ops[-1] = last[0]
            mods = last[1] if len(last) > 1 else ''
        self.mods = mods
        E = lambda i: _expand(ops[i]) if i < len(ops) else []
        allr = lambda a: [x for i in range(a, len(ops)) for x in E(i)]
        base = re.sub(r'_(e32|e64|dpp|sdwa)$', '', op)
        if op.startswith('v_mfma'):
            self.kind = 'mfma'
            self.w = set(E(0)); self.srcAB = set(E(1) + E(2)); self.srcC = set(E(3)); self.r = self.srcAB | self.srcC
            self.passes = 8 if '32x32x16' in op else 4 if '16x16x32' in op else 16
        elif op.startswith('v_'):
            self.kind = 'valu'
            if 'row_' in mods or 'quad_perm' in mods or 'wave_' in mods or op.endswith('_dpp'): self.dpp = True
            if base.startswith('v_cmp'):
                self.w = set(E(0)); self.r = set(allr(1))
            elif base in ('v_swap_b32', 'v_permlane32_swap_b32', 'v_permlane16_swap_b32'):
                self.w = set(E(0) + E(1)); self.r = set(E(0) + E(1))
            elif base in ('v_add_co_u32', 'v_sub_co_u32', 'v_addc_co_u32', 'v_subb_co_u32', 'v_mad_u64_u32', 'v_div_scale_f32'):
                self.w = set(E(0) + E(1)); self.r = set(allr(2))
            else:
                self.w = set(E(0)); self.r = set(allr(1))
                if base in ('v_fmac_f32', 'v_pk_fmac_f16', 'v_dot2c_f32_bf16', 'v_writelane_b32') or self.dpp or 'op_sel' in mods and False:
                    self.r |= set(E(0))
                if base == 'v_cndmask_b32' and len(ops) == 3: self.r.add(('s', 'vcc'))
        elif op.startswith('buffer_') or op.startswith('global_'):
            self.kind = 'vmem'
            islds = re.search(r'\blds\b', mods) is not None or '_lds_' in op
            if islds:
                self.r = set(allr(0)) | {('s', 'm0')}; self.kind = 'vmem'; self.ldsdma = True
            elif 'store' in op or ('atomic' in op and 'sc0' not in mods):
                self.r = set(allr(0))
                if 'x3' in op or 'x4' in op:
                    self.wide_store_data = set(E(0) if op.startswith('buffer_') else E(1))
            else:
                self.w = set(E(0)); self.r = set(allr(1))
                if 'd16' in op or 'atomic' in op: self.r |= set(E(0))
        elif op.startswith('ds_'):
            self.kind = 'ds'
            if 'write' in op or op.startswith('ds_add') :
                self.r = set(allr(0))
            else:
                self.w = set(E(0)); self.r = set(allr(1))
        elif op.startswith('s_'):
            self.kind = 'salu'
            if op in ('s_nop', 's_waitcnt', 's_barrier', 's_endpgm', 's_branch', 's_setprio', 's_sleep') or op.startswith('s_cbranch'):
                pass
            elif op.startswith('s_cmp') or op.startswith('s_bitcmp'):
                self.r = set(allr(0))
            else:
                self.w = set(E(0)); self.r = set(allr(1))
                if 'saveexec' in op: self.w.add(('s', 'exec'))
        self.base = base
        self.dotAB = set(E(1) + E(2)) if base.startswith('v_dot') else set()
    def states(self):
        if self.kind == 'none': return 0
        if self.op == 's_nop': return int(self.text.split(';')[0].split()[1], 0) + 1
        return 1

def need(p, c):
    n = 0
    vw = {x for x in p.w if x[0] in 'va'}
    sw = {x for x in p.w if x[0] == 's'}
    if p.kind == 'valu':
        if c.kind == 'mfma' and vw & c.r: n = max(n, 2)
        if c.kind == 'valu':
            if c.dpp and vw & c.r: n = max(n, 2)
            if c.base.startswith('v_permlane') and vw & c.r: n = max(n, 2)
            if c.base in ('v_readlane_b32', 'v_readfirstlane_b32') and vw & c.r: n = max(n, 1)
            if p.base in TRANS and c.base not in TRANS and vw & c.r: n = max(n, 1)
            if p.base in TRANS and vw & c.r: n = max(n, 1)
            if sw & c.r:
                n = max(n, 4 if c.base in ('v_readlane_b32', 'v_writelane_b32', 'v_div_fmas_f32') else 2)
            if (('op_sel' in p.mods and not p.base.endswith('_f32')) or 'sdwa' in p.op or 'dst_sel' in p.mods) and vw & (c.r | c.w): n = max(n, 1)
            if p.base.startswith('v_dot') and vw & (c.r | c.w):
                same_c = c.base == p.base and not (vw & c.dotAB)
                if not same_c: n = max(n, 3)
        if c.kind in ('vmem',) and sw & c.r: n = max(n, 5)
        if c.kind == 'salu' and sw & c.r: n = max(n, 1)
        if p.base in TRANS and c.kind in ('vmem', 'ds') and vw & c.r: n = max(n, 1)
    if p.kind == 'mfma':
        big = {4: 8, 8: 12, 16: 20}[p.passes]; mid = {4: 6, 8: 10, 16: 18}[p.passes]; war = {4: 3, 8: 7, 16: 15}[p.passes]
        if c.kind == 'mfma':
            if p.w & c.srcAB: n = max(n, big)
            if p.w & c.srcC:
                if not (p.w == c.srcC and p.passes == c.passes): n = max(n, mid)
            if p.w & c.w and not (p.w & c.srcC): n = max(n, mid)
        elif c.kind in ('valu', 'vmem', 'ds'):
            if p.w & (c.r | c.w): n = max(n, big)
            if c.kind == 'valu' and p.srcC & c.w: n = max(n, war)
            if c.kind in ('vmem', 'ds') and p.srcC & c.w: n = max(n, war)
    if p.kind == 'vmem' and p.wide_store_data:
        if p.wide_store_data & c.w: n = max(n, 2 if c.kind == 'valu' else 1)
    if p.kind == 'salu' and ('s', 'm0') in p.w and c.kind == 'vmem' and ('s', 'm0') in c.r: n = max(n, 1)
    return n

class Asm:
    def __init__(self):
        self.ins = []
        self.vmq = []
        self.bg = []
        self.bg_every = 0
        self._cnt = 0
        self._inbg = False
    def __call__(self, text, tag=None):
        for line in text.split('\n'):
            line = line.strip()
            if not line: continue
            ins = Ins(line)
            self.ins.append(ins)
            if ins.kind == 'vmem': self.vmq.append(tag)
            if ins.kind != 'none' and not self._inbg and self.bg_every and self.bg:
                self._cnt += 2 if ins.base in TRANS else 1
                if ins.kind == 'mfma': self._cnt += ins.passes // 2
                if self._cnt >= self.bg_every:
                    self._cnt = 0; self.bg_issue(1)
    def bg_issue(self, n):
        self._inbg = True
        for _ in range(n):
            if not self.bg: break
            lines, tag = self.bg.pop(0)
            for l in lines: self(l, tag)
        self._inbg = False
    def waitvm(self, tag, extra=''):
        idx = max(i for i, t in enumerate(self.vmq) if t == tag)
        n = len(self.vmq) - 1 - idx
        self._inbg, sv = True, self._inbg
        self(f's_waitcnt vmcnt({min(n, 63)}) {extra}'.strip())
        self._inbg = sv
    def vm_empty(self):
        pass
    def finalize(self):
        out = []
        for c in self.ins:
            if c.kind != 'none':
                dist = 0; pad = 0
                for p in reversed(out):
                    if dist >= 20: break
                    if p.kind == 'none': continue
                    n = need(p, c)
                    if n > dist: pad = max(pad, n - dist)
                    dist += p.states()
                while pad > 0:
                    k = min(pad, 16)
                    out.append(Ins(f's_nop {k-1}')); pad -= k
            out.append(c)
        return '\n'.join(('' if i.label or i.directive else '    ') + i.text for i in out) + '\n'

def vr(a, n=1, p='v'):
    return f'{p}{a}' if n == 1 else f'{p}[{a}:{a+n-1}]'
def ar(a, n=1): return vr(a, n, 'a')
def sr(a, n=1): return vr(a, n, 's')
```

```python
import sys, os, struct
sys.path.insert(0, 'gen')
from asmlib import *

MOD = 0
FLG = 0x8000
BLK = 10368
VV = 0x100000
VP = 0x400000
WW = 0x700000
WGU = 0xA00000
WD = 0xE00000
X1 = 0x1000000
H2 = 0x1300000
HH = 0x1600000
WS_USED = 0x1C00000
HUGE = 0x40000000
A_X, A_WR, A_WI, A_WG, A_WU, A_WD, A_C, A_WM, A_OUT, A_DBG, A_WS = 0, 8, 16, 32, 40, 48, 56, 64, 72, 80, 88
M32 = 'v_mfma_f32_32x32x16_bf16'
M16 = 'v_mfma_f32_16x16x32_bf16'
def fl(x): return '0x%08x' % struct.unpack('<I', struct.pack('<f', x))[0]
INSTR = os.environ.get('INSTR', '0') == '1'
STAMP = 0x2000000
POLL_MAX = 1 << 14

class St:
    def __init__(self, a, kid):
        self.a = a; self.kid = kid; self.n = 0
        if INSTR:
            a('s_memrealtime s[64:65]')
            self.stamp()
    def stamp(self):
        if not INSTR: return
        assert self.n < 14
        self.a(f's_memtime s[{68+2*self.n}:{69+2*self.n}]'); self.n += 1
    def end(self):
        if not INSTR: return
        a = self.a
        a('s_waitcnt vmcnt(0)')
        self.stamp()
        a('s_memrealtime s[66:67]')
        a('s_mov_b64 exec, -1')
        a(f's_add_u32 s96, s4, {STAMP + self.kid * 0x100000}')
        a('s_addc_u32 s97, s5, 0')
        a('s_mov_b32 s98, 0x100000')
        a('s_mov_b32 s99, 0x20000')
        a('s_lshl_b32 s100, s2, 9')
        a('s_lshl_b32 s101, s3, 6')
        a('s_add_u32 s100, s100, s101')
        a('s_waitcnt lgkmcnt(0)')
        a('v_mov_b32 v1, 0')
        for i, r in enumerate([64, 66] + [68 + 2 * i for i in range(self.n)]):
            a(f'v_mov_b32 v2, s{r}')
            a(f'buffer_store_dword v2, v1, s[96:99], s100 offen offset:{4*i}')

def srd(a, d, lo, size, off=0):
    if off:
        a(f's_add_u32 s{d}, s{lo}, {off}')
        a(f's_addc_u32 s{d+1}, s{lo+1}, 0')
    else:
        a(f's_mov_b32 s{d}, s{lo}')
        a(f's_mov_b32 s{d+1}, s{lo+1}')
    a(f's_mov_b32 s{d+2}, {size}')
    a(f's_mov_b32 s{d+3}, 0x20000')

def pkb(r):
    return vr(r & ~1, 2), r & 1

def ln_stats(a, XA, XB, T, st, fill):
    for i in range(5):
        c = lambda r: '0' if i == 0 else f'v{r}'
        a(f'v_dot2_f32_bf16 v{T}, v{XA+i}, s33, {c(T)}')
        a(f'v_dot2_f32_bf16 v{T+1}, v{XB+i}, s33, {c(T+1)}')
        a(f'v_dot2_f32_bf16 v{T+2}, v{XA+i}, v{XA+i}, {c(T+2)}')
        a(f'v_dot2_f32_bf16 v{T+3}, v{XB+i}, v{XB+i}, {c(T+3)}')
    for m in ('quad_perm:[1,0,3,2] row_mask:0xf bank_mask:0xf', 'quad_perm:[2,3,0,1] row_mask:0xf bank_mask:0xf',
              'row_ror:4 row_mask:0xf bank_mask:0xf', 'row_ror:8 row_mask:0xf bank_mask:0xf',
              'row_bcast:15 row_mask:0xa bank_mask:0xf', 'row_bcast:31 row_mask:0xc bank_mask:0xf'):
        for r in range(4):
            a(f'v_add_f32_dpp v{T+r}, v{T+r}, v{T+r} {m}')
    for i in range(4):
        a(f'v_readlane_b32 s{st+i}, v{T+i}, 63')
    a(f'v_mov_b32 v{T+4}, {fl(1/640)}')
    a(f'v_mov_b32 v{T+5}, {fl(1e-5)}')
    fill = list(fill)
    def F(n=1):
        for _ in range(n):
            if fill: a(fill.pop(0))
    a(f'v_pk_mul_f32 {vr(T+6,2)}, {vr(T+4,2)}, {sr(st,2)} op_sel_hi:[0,1]')
    a(f'v_pk_fma_f32 {vr(T,2)}, {vr(T+4,2)}, {sr(st+2,2)}, {vr(T+4,2)} op_sel:[0,0,1] op_sel_hi:[0,1,1]')
    a(f'v_pk_fma_f32 {vr(T,2)}, {vr(T+6,2)}, {vr(T+6,2)}, {vr(T,2)} neg_lo:[1,0,0] neg_hi:[1,0,0]')
    a(f'v_max_f32 v{T}, v{T+5}, v{T}')
    a(f'v_max_f32 v{T+1}, v{T+5}, v{T+1}')
    a(f'v_rsq_f32 v{T}, v{T}')
    a(f'v_rsq_f32 v{T+1}, v{T+1}')
    F(len(fill))
    a(f'v_pk_mul_f32 {vr(T+2,2)}, {vr(T+6,2)}, {vr(T,2)} neg_lo:[1,0] neg_hi:[1,0]')

def load40(a, dst, voff, soff, off, tag):
    a(f'buffer_load_dwordx4 {vr(dst,4)}, v{voff}, s[16:19], {soff} offen offset:{off}', tag)
    a(f'buffer_load_dwordx4 {vr(dst+4,4)}, v{voff}, s[16:19], {soff} offen offset:{off+16}', tag)
    a(f'buffer_load_dwordx2 {vr(dst+8,2)}, v{voff}, s[16:19], {soff} offen offset:{off+32}', tag)

def cs_pair(a, th, t0, t1, dre, dim, inv=False):
    a(f'v_cos_f32 v{t0}, v{th}')
    a(f'v_sin_f32 v{t1}, v{th}')
    def fin():
        if inv:
            a(f'v_cvt_pk_bf16_f32 v{dre}, v{t0}, -v{t1}')
            a(f'v_cvt_pk_bf16_f32 v{dim}, v{t1}, v{t0}')
        else:
            a(f'v_cvt_pk_bf16_f32 v{dre}, v{t0}, v{t1}')
            a(f'v_cvt_pk_bf16_f32 v{dim}, -v{t1}, v{t0}')
    return fin

def slot20(a, dst, t):
    a(f'v_and_b32 v{dst}, 3, v3')
    a(f'v_lshrrev_b32 v{t}, 3, v3')
    a(f'v_lshl_add_u32 v{dst}, v{t}, 2, v{dst}')
    a(f'v_min_u32 v{dst}, 9, v{dst}')
    a(f'v_bfe_u32 v{t}, v3, 2, 1')
    a(f'v_mad_u32_u24 v{dst}, v{t}, 10, v{dst}')

def poll(a, name, loads, regs, t, zero_is_bad=False):
    sv, a.bg_every = a.bg_every, 0
    a(f's_mov_b32 s34, {POLL_MAX}')
    a(f'L{name}:')
    for l in loads: a(l, name)
    a('s_waitcnt vmcnt(0)')
    op = 'min' if zero_is_bad else 'max'
    rs = list(regs)
    a(f'v_{op}3_u32 v{t}, v{rs[0]}, v{rs[1]}, v{rs[2]}'); rs = rs[3:]
    while rs:
        if len(rs) >= 2: a(f'v_{op}3_u32 v{t}, v{t}, v{rs[0]}, v{rs[1]}'); rs = rs[2:]
        else: a(f'v_{op}_u32 v{t}, v{t}, v{rs[0]}'); rs = rs[1:]
    a(f'v_cmp_eq_u32 vcc, {0 if zero_is_bad else -1}, v{t}')
    a('s_sub_u32 s34, s34, 1')
    a(f's_cbranch_scc1 L{name}_x')
    a('s_cmp_lg_u64 vcc, 0')
    a(f's_cbranch_scc1 L{name}')
    a(f'L{name}_x:')
    a.bg_every = sv

B1T = 8

def mega():
    a = Asm()
    a('s_cmp_ge_u32 s2, 256')
    a('s_cbranch_scc1 Lm_end')
    st = St(a, 1)
    a(f's_load_dwordx2 s[4:5], s[0:1], {A_WS}')
    a(f's_load_dwordx2 s[6:7], s[0:1], {A_X}')
    a(f's_load_dwordx2 s[8:9], s[0:1], {A_OUT}')
    a(f's_load_dwordx4 s[52:55], s[0:1], {A_WG}')
    a(f's_load_dwordx2 s[56:57], s[0:1], {A_WD}')
    a('v_and_b32 v1, 63, v0')
    a('v_lshrrev_b32 v2, 6, v0')
    a('v_readfirstlane_b32 s3, v2')
    a('v_lshlrev_b32 v2, 4, v1')
    a('v_and_b32 v3, 31, v1')
    a('v_lshrrev_b32 v4, 5, v1')
    a('v_lshl_add_u32 v5, v3, 1, v4')
    a('s_bfe_u32 s10, s2, 0x20001')
    a('s_lshl_b32 s10, s10, 2')
    a('s_lshr_b32 s11, s2, 6')
    a('s_add_u32 s10, s10, s11')
    a('s_and_b32 s11, s2, 1')
    a('s_lshl_b32 s11, s11, 3')
    a('s_bfe_u32 s12, s2, 0x30003')
    a('s_add_u32 s11, s11, s12')
    a('s_lshl_b32 s12, s10, 4')
    a('s_add_u32 s12, s12, s11')
    a('s_mov_b32 s13, 0xffff0000')
    a('s_mov_b32 s33, 0x3f803f80')
    a('s_and_b32 s14, s2, 7')
    a('s_lshl_b32 s14, s14, 5')
    a('s_lshr_b32 s35, s2, 3')
    a('s_add_u32 s14, s14, s35')
    a('s_min_u32 s15, s14, 213')
    a('s_lshl_b32 s35, s3, 8')
    a('s_add_u32 s35, s35, s12')
    a('s_mul_i32 s36, s35, 1280')
    a(f's_add_u32 s37, s36, {1024*1280}')
    a('v_mul_u32_u24 v6, 20, v5')
    a('v_lshlrev_b32 v7, 1, v6')
    a('s_lshl_b32 s38, s11, 2')
    a('s_add_u32 s38, s38, s3')
    XA, XB, CA, SA, A2, TW, A3, F, FR, AR, AI, AX, PK, T, AD, WRAW = 40, 46, 52, 62, 72, 96, 116, 120, 140, 160, 176, 192, 208, 220, 232, 244
    T2 = 4 * 2880
    a(f'v_cvt_f32_u32 v{T}, v3')
    a(f'v_mul_f32 v{T}, {fl(1/32)}, v{T}')
    a(f'v_cvt_f32_u32 v{T+1}, v4')
    a(f'v_mul_f32 v{T+2}, 4.0, v{T}')
    a(f'v_mul_f32 v{T+3}, v{T+1}, v{T+2}')
    for j in range(2):
        for i in range(4):
            fin = cs_pair(a, T+3, T+4, T+5, B1T+4*j+i, B1T+16+4*j+i)
            a(f'v_add_f32 v{T+3}, v{T+3}, v{T}')
            if i == 3: a(f'v_add_f32 v{T+3}, v{T+3}, v{T+2}')
            fin()
    a('s_waitcnt lgkmcnt(0)')
    srd(a, 20, 6, 2048 * 1280)
    a(f'buffer_load_dwordx4 {vr(XA,4)}, v6, s[20:23], s36 offen', 'x')
    a(f'buffer_load_dword v{XA+4}, v6, s[20:23], s36 offen offset:16', 'x')
    a(f'buffer_load_dwordx4 {vr(XB,4)}, v6, s[20:23], s37 offen', 'x')
    a(f'buffer_load_dword v{XB+4}, v6, s[20:23], s37 offen offset:16', 'x')
    srd(a, 16, 4, WS_USED)
    load40(a, CA, 7, '0', MOD + 2560, 'mod')
    load40(a, SA, 7, '0', MOD, 'mod')
    srd(a, 24, 8, 2048 * 1280)
    a('s_cmp_ge_u32 s2, 160')
    a('s_cbranch_scc1 Lsd_d')
    a('s_lshr_b32 s39, s2, 3')
    a('s_cmp_ge_u32 s3, 2')
    a('s_cselect_b32 s28, s54, s52')
    a('s_cselect_b32 s29, s55, s53')
    a('s_and_b32 s42, s3, 1')
    a('s_lshl_b32 s42, s42, 1')
    a('s_lshl_b32 s43, s39, 2')
    a('s_add_u32 s42, s42, s43')
    a('s_mul_i32 s43, s42, 10')
    a('s_mul_i32 s44, s42, 40')
    a(f's_sub_u32 s44, s44, {64*40-8}')
    a('s_cmp_lt_u32 s42, 64')
    a('s_cselect_b32 s43, s43, s44')
    a('s_cselect_b32 s44, 1, 9')
    a('s_cselect_b32 s45, 10, 40')
    a('s_mul_i32 s58, s43, 3072')
    a('s_and_b32 s43, s2, 7')
    a('s_mul_i32 s43, s43, 384')
    a('s_add_u32 s58, s58, s43')
    a('s_mov_b32 s59, 3072')
    a('s_mul_i32 s60, s44, 3072')
    a('s_mul_i32 s45, s45, 3072')
    a(f's_sub_u32 s45, s45, {24*16}')
    a('v_cmp_le_u32 vcc, 24, v1')
    a('v_mov_b32 v240, s45')
    a('v_cndmask_b32 v240, 0, v240, vcc')
    a('v_add_u32 v240, v240, v2')
    a('s_movk_i32 s61, 48')
    a('s_branch Lsd_j')
    a('Lsd_d:')
    a('s_sub_u32 s39, s2, 160')
    a('s_mov_b32 s28, s56')
    a('s_mov_b32 s29, s57')
    a('s_lshr_b32 s42, s39, 1')
    a('s_lshl_b32 s42, s42, 2')
    a('s_add_u32 s42, s42, s3')
    a('s_mul_i32 s58, s42, 10240')
    a('s_and_b32 s42, s39, 1')
    a('s_mul_i32 s42, s42, 640')
    a('s_add_u32 s58, s58, s42')
    a('s_mov_b32 s59, 1280')
    a('s_mov_b32 s60, 1280')
    a('v_mov_b32 v240, v2')
    a('s_movk_i32 s61, 40')
    a('Lsd_j:')
    a(f's_mov_b32 s30, {640*3072}')
    a('s_mov_b32 s31, 0x20000')
    a(f'v_mov_b32 v241, {HUGE}')
    a('v_cmp_gt_u32 vcc, s61, v1')
    a('v_cndmask_b32 v240, v241, v240, vcc')
    for e in range(8):
        if e == 0: a('s_mov_b32 s50, s58')
        else: a(f's_add_u32 s{50+e}, s{49+e}, s{59 if e & 1 else 60}')
    for e in range(8):
        a.bg.append(([f'buffer_load_dwordx4 {ar(4*e,4)}, v240, s[28:31], s{50+e} offen'], 'side'))
    a('s_mul_i32 s58, s15, 12288')
    a('s_lshl_b32 s35, s3, 10')
    a('s_add_u32 s58, s58, s35')
    a(f's_add_u32 s58, s58, {WW}')
    a('s_add_u32 s59, s58, 4096')
    a('s_add_u32 s60, s58, 8192')
    for u in range(3):
        a.bg.append(([f'buffer_load_dwordx4 {vr(WRAW+4*u,4)}, v2, s[16:19], s{58+u} offen'], 'ww'))
    a.bg_every = BG1
    a('s_mul_i32 s62, s14, 12288')
    a('s_mul_i32 s35, s3, 3072')
    a('s_add_u32 s62, s62, s35')
    a(f's_add_u32 s62, s62, {VP}')
    for i in range(4): a(f'v_mov_b32 v{156+i}, -1')
    for u in range(3):
        a.bg.append(([f'buffer_store_dwordx4 v[156:159], v2, s[16:19], s62 offen offset:{1024*u} sc1'], 'fill'))
    a('s_mul_i32 s40, s38, 3')
    for e in range(3):
        a(f's_add_u32 s41, s40, {e}')
        a(f's_lshr_b32 s{42+e}, s41, 2')
        a(f's_lshl_b32 s{42+e}, s{42+e}, 12')
        a('s_and_b32 s41, s41, 3')
        a('s_lshl_b32 s41, s41, 8')
        a(f's_add_u32 s{42+e}, s{42+e}, s41')
    a(f'v_and_b32 v{T+9}, 15, v1')
    a(f'v_lshlrev_b32 v{T+9}, 4, v{T+9}')
    a(f'v_lshrrev_b32 v{T+10}, 4, v1')
    a(f'v_lshl_add_u32 v243, v{T+10}, 10, v{T+9}')
    a('v_add_u32 v243, s44, v243')
    a(f'v_and_b32 v{T+10}, 1, v{T+10}')
    a(f'v_lshl_add_u32 v242, v{T+10}, 10, v{T+9}')
    a(f'v_mov_b32 v{T+9}, s42')
    a(f'v_mov_b32 v{T+10}, s43')
    a('v_cmp_eq_u32 vcc, 0, v4')
    a(f'v_cndmask_b32 v{T+9}, v{T+10}, v{T+9}, vcc')
    a(f'v_add_u32 v242, v242, v{T+9}')
    a(f's_mul_i32 s40, s10, {2*196608}')
    a(f's_add_u32 s40, s40, {HH}')
    a('s_add_u32 s41, s40, 196608')
    for qp in range(4):
        a.bg.append(([f'buffer_store_dwordx4 v[156:159], v242, s[16:19], s{40+(qp>>1)} offen offset:{2048*(qp&1)} sc1'], 'fill'))
    for qq in range(2):
        a.bg.append(([f'buffer_store_dwordx4 v[156:159], v243, s[16:19], s{40+qq} offen sc1'], 'fill'))
    a(f'v_and_b32 v{T+4}, 1, v3')
    a(f'v_mul_u32_u24 v{T+4}, 0x8000, v{T+4}')
    a(f'v_lshl_or_b32 v{T+4}, v{T+4}, 16, v{T+4}')
    for k in range(8):
        a(f'v_xor_b32 v{B1T+8+k}, v{T+4}, v{B1T+k}')
        a(f'v_xor_b32 v{B1T+24+k}, v{T+4}, v{B1T+16+k}')
    a(f'v_mul_u32_u24 v{AD}, 1440, v4')
    a(f'v_lshl_add_u32 v{AD}, v3, 2, v{AD}')
    a('s_mul_i32 s35, s3, 2880')
    a(f'v_add_u32 v{AD}, s35, v{AD}')
    slot20(a, T+6, T+7)
    a(f'v_mul_u32_u24 v{AD+1}, 144, v{T+6}')
    a(f'v_lshl_add_u32 v{AD+1}, v4, 4, v{AD+1}')
    a(f'v_add_u32 v{AD+1}, s35, v{AD+1}')
    a(f'v_mul_f32 v{T}, {fl(1/20)}, v{T}')
    a(f'v_mul_f32 v{T+1}, {fl(10.0)}, v{T+1}')
    a(f'v_mul_f32 v{T+3}, v{T+1}, v{T}')
    for r in range(10):
        a(f'v_cos_f32 v{TW+r}, v{T+3}')
        a(f'v_sin_f32 v{TW+10+r}, v{T+3}')
        if r < 9: a(f'v_add_f32 v{T+3}, v{T+3}, v{T}')
    a.waitvm('x')
    st.stamp()
    fill = []
    for i in range(5):
        for X, o in ((XA, 0), (XB, 1)):
            fill.append(f'v_lshlrev_b32 v{F+4*i+o}, 16, v{X+i}')
            fill.append(f'v_and_b32 v{F+4*i+2+o}, s13, v{X+i}')
    ln_stats(a, XA, XB, AX, 46, fill)
    a.waitvm('mod')
    for i in range(10):
        c, cs_ = pkb(CA+i); s_, ss = pkb(SA+i)
        a(f'v_pk_fma_f32 {vr(F+2*i,2)}, {vr(F+2*i,2)}, {vr(AX,2)}, {vr(AX+2,2)}')
        a(f'v_pk_fma_f32 {vr(F+2*i,2)}, {vr(F+2*i,2)}, {c}, {s_} op_sel:[0,{cs_},{ss}] op_sel_hi:[1,{cs_},{ss}]')
        a(f'v_cvt_pk_bf16_f32 v{F+2*i}, v{F+2*i}, v{F+2*i+1}')
        a(f'ds_write_b32 v{AD}, v{F+2*i} offset:{144*i}')
    a(f'v_cvt_f32_u32 v{T}, v{T+6}')
    a(f'v_mul_f32 v{T}, {fl(1/20)}, v{T}')
    a(f'v_mul_f32 v{T+3}, v{T+1}, v{T}')
    a('s_waitcnt lgkmcnt(0)')
    for j in range(4):
        a(f'ds_read_b128 {vr(FR+4*j,4)}, v{AD+1} offset:{32*j}')
    def a2(r):
        fin = cs_pair(a, T+3, T+4, T+5, A2+r, A2+12+r)
        a(f'v_add_f32 v{T+3}, v{T+3}, v{T}')
        fin()
    for r in range(3): a2(r)
    for j in range(4):
        a(f's_waitcnt lgkmcnt({3-j})')
        a(f'{M32} {vr(AR,16)}, {vr(FR+4*j,4)}, {vr(B1T+4*j,4)}, {"0" if j==0 else vr(AR,16)}')
        a2(3 + 2*j) if j < 3 else a2(9)
        a(f'{M32} {vr(AI,16)}, {vr(FR+4*j,4)}, {vr(B1T+16+4*j,4)}, {"0" if j==0 else vr(AI,16)}')
        if j < 3: a2(4 + 2*j)
    for r in (A2+10, A2+11, A2+22, A2+23, PK+10, PK+11): a(f'v_mov_b32 v{r}, 0')
    a(f'v_mul_u32_u24 v{AD+2}, 5120, v4')
    a(f'v_lshl_add_u32 v{AD+2}, v3, 4, v{AD+2}')
    a('s_lshl_b32 s35, s3, 2')
    a(f's_add_u32 s35, s35, {T2}')
    a(f'v_add_u32 v{AD+2}, s35, v{AD+2}')
    for r in range(0, 10, 2):
        a(f'v_pk_mul_f32 {vr(F+r,2)}, {vr(AR+r,2)}, {vr(TW+r,2)}')
        a(f'v_pk_mul_f32 {vr(F+10+r,2)}, {vr(AR+r,2)}, {vr(TW+10+r,2)} neg_lo:[1,0] neg_hi:[1,0]')
    for r in range(0, 10, 2):
        a(f'v_pk_fma_f32 {vr(F+r,2)}, {vr(AI+r,2)}, {vr(TW+10+r,2)}, {vr(F+r,2)}')
        a(f'v_pk_fma_f32 {vr(F+10+r,2)}, {vr(AI+r,2)}, {vr(TW+r,2)}, {vr(F+10+r,2)}')
        a(f'v_cvt_pk_bf16_f32 v{PK+r}, v{F+r}, v{F+10+r}')
        a(f'v_cvt_pk_bf16_f32 v{PK+r+1}, v{F+r+1}, v{F+11+r}')
    misc = []
    m = misc.append
    m(f'v_and_b32 v{T}, 4, v3'); m(f'v_bfe_u32 v{T+1}, v3, 3, 1'); m(f'v_lshl_add_u32 v{T}, v{T+1}, 1, v{T}')
    m(f'v_bfe_u32 v{T+1}, v3, 1, 1'); m(f'v_add_u32 v{T}, v{T}, v{T+1}'); m(f'v_cvt_f32_u32 v{T}, v{T}')
    m(f'v_xor_b32 v{T+1}, v{T+1}, v4')
    m(f'v_and_b32 v{T+2}, 1, v3'); m(f'v_sub_u32 v{T+1}, v{T+2}, v{T+1}'); m(f'v_cvt_f32_i32 v{T+1}, v{T+1}')
    m(f'v_fmaak_f32 v{T+1}, v{T+8}, v{T+1}, {fl(0.125)}')
    m(f'v_cvt_f32_u32 v{T+2}, s12'); m(f'v_mul_f32 v{T+2}, {fl(1/2048)}, v{T+2}')
    m(f'v_fma_f32 v{T+3}, v{T}, v{T+2}, v{T+1}')
    m(f'v_mul_f32 v{T}, {fl(0.125)}, v{T}')
    m(f'v_cvt_f32_u32 v{T+2}, v4'); m(f'v_fmaak_f32 v{T+2}, 0.5, v{T+2}, {fl(-0.25)}')
    for p in range(4):
        m(f'v_add_f32 v{T+5}, v{T+3}, v{T+2}'); m(f'v_cos_f32 v{T+4}, v{T+3}'); m(f'v_cos_f32 v{T+5}, v{T+5}')
        m(f'v_add_f32 v{T+3}, v{T+3}, v{T}'); m(f'v_cvt_pk_bf16_f32 v{A3+p}, v{T+4}, v{T+5}')
    a(f'v_mov_b32 v{T+8}, {fl(0.25)}')
    for j in range(3):
        for acc, o in ((AR, 0), (AI, 12)):
            a(f'{M32} {vr(acc,16)}, {vr(A2+o+4*j,4)}, {vr(PK+4*j,4)}, {"0" if j==0 else vr(acc,16)}')
            for _ in range(6):
                if misc: a(misc.pop(0))
    while misc: a(misc.pop(0))
    for r in range(10):
        a(f'v_cvt_pk_bf16_f32 v{F+r}, v{AR+r}, v{AI+r}')
        a(f'ds_write_b32 v{AD+2}, v{F+r} offset:{512*r}')
    a('s_lshl_b32 s35, s3, 5')
    a('v_cmp_eq_u32 vcc, 0, v4')
    a(f'v_add_u32 v{T}, s35, v3')
    a(f'v_sub_u32 v{T+1}, 640, v{T}')
    a(f'v_cndmask_b32 v{T+2}, v{T+1}, v{T}, vcc')
    a(f'v_mov_b32 v{T+3}, 0xfffff800')
    a(f'v_mov_b32 v{T+4}, 0x800')
    a(f'v_cndmask_b32 v{T+3}, v{T+3}, v{T+4}, vcc')
    a(f'v_lshlrev_b32 v{T+2}, 4, v{T+2}')
    a(f'v_add_u32 v{T+2}, {T2}, v{T+2}')
    a(f'v_add_u32 v{AD+4}, v{T+2}, v{T+3}')
    a(f'v_add_u32 v{AD+5}, v{AD+4}, v{T+3}')
    a(f'v_mov_b32 v{T+4}, {T2}')
    a(f'v_cmp_eq_u32 vcc, 0, v{T}')
    a(f'v_cndmask_b32 v{AD+3}, v{T+2}, v{T+4}, vcc')
    a(f'v_lshlrev_b32 v{AD+6}, 4, v5')
    a(f'v_mov_b32 v{T+4}, {HUGE}')
    a(f'v_cmp_ge_u32 vcc, 64, v{T}')
    a(f'v_cndmask_b32 v{AD+7}, v{T+4}, v{AD+6}, vcc')
    a(f's_mul_i32 s45, s12, {BLK}')
    a('s_lshl_b32 s35, s3, 10')
    a('s_add_u32 s45, s45, s35')
    a(f's_add_u32 s45, s45, {VV}')
    a('s_add_u32 s46, s45, 4096')
    a('s_add_u32 s47, s45, 8192')
    a.bg_issue(99)
    a.bg_every = 0
    a('s_waitcnt lgkmcnt(0)')
    a('s_barrier')
    for i in range(3):
        a(f'ds_read_b128 {vr(FR+4*i,4)}, v{AD+3+i}')
    accs = [AR, AI, AX]
    for i in range(3):
        a(f's_waitcnt lgkmcnt({2-i})')
        a(f'{M32} {vr(accs[i],16)}, {vr(A3,4)}, {vr(FR+4*i,4)}, 0')
    for i in range(3):
        for q in range(4):
            a(f'v_cvt_pk_bf16_f32 v{PK+4*i+q}, v{accs[i]+2*q}, v{accs[i]+2*q+1}')
        if i == 0: a.waitvm('fill')
        a(f'buffer_store_dwordx4 {vr(PK+4*i,4)}, v{AD+6+(i==2)}, s[16:19], s{45+i} offen sc1', 'e1')
    st.stamp()
    SL = 81920
    SR, SD = 100, 132
    a('s_mov_b32 s50, 0x05040100')
    a('s_mov_b32 s51, 0x07060302')
    a('s_cmp_ge_u32 s2, 160')
    a('s_cbranch_scc1 Lsp_d')
    a('v_cmp_le_u32 vcc, 24, v1')
    a('v_cndmask_b32 v168, 0, 1, vcc')
    a('v_mul_u32_u24 v169, 24, v168')
    a('v_sub_u32 v169, v1, v169')
    a('v_mul_u32_u24 v170, 342, v169')
    a('v_lshrrev_b32 v170, 10, v170')
    a('v_mul_u32_u24 v171, 3, v170')
    a('v_sub_u32 v171, v169, v171')
    a('v_mul_u32_u24 v170, 3072, v170')
    a('v_lshl_add_u32 v170, v168, 8, v170')
    a('s_and_b32 s42, s3, 1')
    a('s_lshl_b32 s42, s42, 9')
    a(f's_add_u32 s42, s42, {SL}')
    a('s_lshr_b32 s43, s3, 1')
    a('s_lshl_b32 s44, s43, 10')
    a('v_lshl_add_u32 v164, v171, 7, s44')
    a('s_lshl_b32 s44, s43, 5')
    a('s_add_u32 s44, s44, 2048')
    a('v_mov_b32 v165, s44')
    a('v_cmp_gt_u32 vcc, 2, v171')
    a('v_cndmask_b32 v164, v165, v164, vcc')
    a('v_add3_u32 v164, v164, v170, s42')
    a('v_mov_b32 v171, 64')
    a('v_cndmask_b32 v171, v171, 32, vcc')
    a('v_add_u32 v165, v164, v171')
    a('v_add_u32 v166, v165, v171')
    a('v_add_u32 v167, v166, v171')
    a('s_mul_i32 s42, s3, 6144')
    a('s_and_b32 s43, s2, 7')
    a('s_lshl_b32 s43, s43, 3')
    a('s_lshl_b32 s44, s3, 1')
    a('s_add_u32 s43, s43, s44')
    a('s_mul_i32 s43, s43, 61440')
    a('s_mul_i32 s44, s39, 3072')
    a('s_add_u32 s43, s43, s44')
    a(f's_add_u32 s52, s43, {WGU}')
    a('s_add_u32 s53, s52, 61440')
    a('s_mov_b32 s54, 0')
    a('s_branch Lsp_j')
    a('Lsp_d:')
    a('s_lshl_b32 s42, s3, 8')
    a(f's_add_u32 s42, s42, {SL}')
    for hq in range(2):
        a(f'v_lshl_add_u32 v168, v1, 1, {hq}')
        a('v_mul_u32_u24 v169, 205, v168')
        a('v_lshrrev_b32 v169, 12, v169')
        a('v_mul_u32_u24 v170, 20, v169')
        a('v_sub_u32 v168, v168, v170')
        a('v_mul_u32_u24 v170, 52, v168')
        a('v_lshrrev_b32 v170, 8, v170')
        a('v_mul_u32_u24 v171, 5, v170')
        a('v_sub_u32 v168, v168, v171')
        a('v_mul_u32_u24 v169, 5120, v169')
        a('v_lshl_add_u32 v169, v168, 10, v169')
        a('v_lshl_add_u32 v169, v170, 6, v169')
        a(f'v_add_u32 v{164+2*hq}, s42, v169')
        a(f'v_add_u32 v{165+2*hq}, 32, v{164+2*hq}')
    a('s_mul_i32 s42, s3, 5120')
    a('s_and_b32 s43, s39, 1')
    a('s_lshl_b32 s43, s43, 2')
    a('s_add_u32 s43, s43, s3')
    a('s_mul_i32 s43, s43, 245760')
    a('s_lshr_b32 s44, s39, 1')
    a('s_mul_i32 s44, s44, 5120')
    a('s_add_u32 s43, s43, s44')
    a(f's_add_u32 s52, s43, {WD}')
    a('s_add_u32 s53, s52, 3072')
    a(f's_mov_b32 s54, {HUGE}')
    a('Lsp_j:')
    a(f's_add_u32 s42, s42, {SL}')
    a('v_add_u32 v168, s42, v2')
    a('v_add_u32 v169, s54, v2')
    for k in range(32): a(f'v_accvgpr_read_b32 v{SR+k}, a{k}')
    a('v_cmp_gt_u32 vcc, s61, v1')
    a('s_and_saveexec_b64 s[42:43], vcc')
    for i in range(8):
        for pp in range(4):
            a(f'v_perm_b32 v{SD+4*i+pp}, v{SR+4*(2*pp+1)+(i>>1)}, v{SR+4*(2*pp)+(i>>1)}, s{50+(i&1)}')
        a(f'ds_write_b128 v{164+(i>>1)}, {vr(SD+4*i,4)} offset:{16*(i&1)}')
    a('s_mov_b64 exec, s[42:43]')
    a('s_waitcnt lgkmcnt(0)')
    a('s_barrier')
    for it in range(6): a(f'ds_read_b128 {vr(172+4*it,4)}, v168 offset:{1024*it}')
    for it in range(6):
        a(f's_waitcnt lgkmcnt({5-it})')
        a(f'buffer_store_dwordx4 {vr(172+4*it,4)}, v{169 if it == 5 else 2}, s[16:19], s{52+it//3} offen offset:{1024*(it%3)} sc1', 'sidest')
    a('s_mul_i32 s35, s38, 61440')
    a(f's_add_u32 s35, s35, {WGU}')
    a('s_add_u32 s28, s4, s35')
    a('s_addc_u32 s29, s5, 0')
    a('s_mov_b32 s30, 61440')
    G, GA_, LW, M, TW, WR, WI, D, RE, IM, T, P = 40, 52, 55, 60, 68, 76, 88, 100, 112, 124, 136, 160
    LB = 24576
    a('v_and_b32 v58, 15, v1')
    a('v_lshrrev_b32 v59, 4, v1')
    a('v_cvt_f32_u32 v58, v58')
    a('v_cvt_f32_u32 v59, v59')
    a(f'v_mul_f32 v{T}, {fl(1/16)}, v58')
    a(f'v_mul_f32 v59, 4.0, v59')
    a(f'v_mul_f32 v{T+1}, v59, v{T}')
    for i in range(4):
        fin = cs_pair(a, T+1, T+2, T+3, M+i, M+4+i)
        a(f'v_mul_f32 v{T+4}, {fl(1/16)}, v{T+1}')
        a(f'v_add_f32 v{T+1}, v{T+1}, v{T}')
        fin()
        a(f'v_cos_f32 v{TW+i}, v{T+4}')
        a(f'v_sin_f32 v{TW+4+i}, v{T+4}')
    a('s_mul_i32 s35, s3, 192')
    for u in range(3):
        a(f'v_add_u32 v{T}, s35, v1')
        if u: a(f'v_add_u32 v{T}, {64*u}, v{T}')
        a(f'v_mul_u32_u24 v{T+1}, 43691, v{T}')
        a(f'v_lshrrev_b32 v{T+1}, 17, v{T+1}')
        a(f'v_mul_u32_u24 v{T+2}, 3, v{T+1}')
        a(f'v_sub_u32 v{T+2}, v{T}, v{T+2}')
        a(f'v_mul_u32_u24 v{LW+u}, 4144, v{T+2}')
        a(f'v_lshl_add_u32 v{LW+u}, v{T+1}, 2, v{LW+u}')
        a(f'v_add_u32 v{LW+u}, {LB}, v{LW+u}')
        a(f'v_and_b32 v{T+3}, 0xc0, v{T+1}')
        a(f'v_and_b32 v{T+4}, 3, v{T+1}')
        a(f'v_lshl_add_u32 v{T+3}, v{T+4}, 4, v{T+3}')
        a(f'v_bfe_u32 v{T+4}, v{T+1}, 2, 4')
        a(f'v_add_u32 v{T+3}, v{T+3}, v{T+4}')
        a(f'v_mul_u32_u24 v{T+3}, {BLK}, v{T+3}')
        a(f'v_lshl_add_u32 v{T+3}, v{T+2}, 4, v{T+3}')
        a(f'v_mov_b32 v{GA_+u}, v{T+3}')
    a('s_lshl_b32 s35, s3, 10')
    a(f's_add_u32 s35, s35, {LB}')
    a('v_add_u32 v58, s35, v2')
    a('s_mul_i32 s45, s15, 48')
    a(f's_add_u32 s45, s45, {VV}')
    a('s_cmp_eq_u32 s15, 0')
    a('s_cselect_b32 s47, 0.5, 1.0')
    a('s_cmp_eq_u32 s15, 213')
    a('s_cselect_b32 s49, 0.5, 1.0')
    a('s_cselect_b32 s48, 0.5, s47')
    for k in range(12):
        a(f'v_lshlrev_b32 v{WR+k}, 16, v{WRAW+k}')
        a(f'v_and_b32 v{WI+k}, s13, v{WRAW+k}')
        a(f'v_mul_f32 v{WR+k}, s{47+k//4}, v{WR+k}')
        a(f'v_mul_f32 v{WI+k}, s{47+k//4}, v{WI+k}')
    a.waitvm('e1')
    poll(a, 'p1', [f'buffer_load_dwordx4 {vr(G+4*u,4)}, v{GA_+u}, s[16:19], s45 offen sc1' for u in range(3)], range(G, G+12), T)
    st.stamp()
    for u in range(3):
        for v in range(4):
            a(f'ds_write_b32 v{LW+u}, v{G+4*u+v} offset:{1024*v}')
    a('s_waitcnt lgkmcnt(0)')
    a('s_barrier')
    for u in range(3): a(f'ds_read_b128 {vr(D+4*u,4)}, v58 offset:{4144*u}')
    def mm(dataA, src, outX, outY, waits=False):
        for jb in range(3):
            if waits: a(f's_waitcnt lgkmcnt({2-jb})')
            d = vr(src + 4*jb, 4)
            for out, mt in ((outX, M), (outY, M+4)):
                o = vr(out + 4*jb, 4)
                a(f'{M16} {o}, {d}, {vr(mt,4)}, 0' if dataA else f'{M16} {o}, {vr(mt,4)}, {d}, 0')
    def cmul(cr, ci, sgn, swap):
        n1 = ' neg_lo:[1,0,0] neg_hi:[1,0,0]'
        for jb in range(3):
            for r in (0, 2):
                k = 4*jb + r
                a(f'v_pk_mul_f32 {vr(T+k,2)}, {vr(RE+k,2)}, {vr(cr(jb)+r,2)}')
                a(f'v_pk_mul_f32 {vr(T+12+k,2)}, {vr(IM+k,2)}, {vr(cr(jb)+r,2)}')
            for r in (0, 2):
                k = 4*jb + r
                a(f'v_pk_fma_f32 {vr(T+k,2)}, {vr(IM+k,2)}, {vr(ci(jb)+r,2)}, {vr(T+k,2)}' + (n1 if sgn > 0 else ''))
                a(f'v_pk_fma_f32 {vr(T+12+k,2)}, {vr(RE+k,2)}, {vr(ci(jb)+r,2)}, {vr(T+12+k,2)}' + (n1 if sgn < 0 else ''))
            for r in range(4):
                k = 4*jb + r
                if swap: a(f'v_cvt_pk_bf16_f32 v{P+k}, v{T+12+k}, v{T+k}')
                else: a(f'v_cvt_pk_bf16_f32 v{P+k}, v{T+k}, v{T+12+k}')
    mm(True, D, RE, IM, True)
    cmul(lambda j: TW, lambda j: TW+4, -1, False)
    mm(False, P, RE, IM)
    cmul(lambda j: WR+4*j, lambda j: WI+4*j, +1, True)
    mm(True, P, IM, RE)
    cmul(lambda j: TW, lambda j: TW+4, +1, True)
    mm(False, P, IM, RE)
    a.bg_every = 0
    for u in range(3):
        for r in range(4): a(f'v_cvt_pk_bf16_f32 v{D+4*u+r}, v{RE+4*u+r}, v{IM+4*u+r}')
        a(f'ds_write_b128 v58, {vr(D+4*u,4)} offset:{4144*u}')
    a('s_waitcnt lgkmcnt(0)')
    a('s_barrier')
    for u in range(3):
        for v in range(4):
            a(f'ds_read_b32 v{G+4*u+v}, v{LW+u} offset:{1024*v}')
    for u in range(3):
        a(f's_waitcnt lgkmcnt({8-4*u})')
        a(f'buffer_store_dwordx4 {vr(G+4*u,4)}, v2, s[16:19], s62 offen offset:{1024*u} sc1', 'e2')
    st.stamp()
    DV, GA_, LW, MA, TW, A3, AR, AI, AX, PK, TI, XA, XB, GAv, CB, SB, T = 172, 52, 55, 60, 84, 116, 120, 136, 152, 184, 40, 200, 206, 212, 222, 232, 244
    FA, FB = 152, 162
    L3 = 40960
    LS = 57344
    a(f'buffer_load_dwordx4 {vr(XA,4)}, v6, s[20:23], s36 offen', 'x3')
    a(f'buffer_load_dword v{XA+4}, v6, s[20:23], s36 offen offset:16', 'x3')
    a(f'buffer_load_dwordx4 {vr(XB,4)}, v6, s[20:23], s37 offen', 'x3')
    a(f'buffer_load_dword v{XB+4}, v6, s[20:23], s37 offen offset:16', 'x3')
    a(f's_mov_b32 s35, {MOD + 2*2560}')
    load40(a, GAv, 7, 's35', 0, 'x3')
    load40(a, SB, 7, 's35', 2560, 'x3')
    a(f's_mov_b32 s35, {MOD + 4*2560}')
    load40(a, CB, 7, 's35', 0, 'x3')
    a('s_mul_i32 s35, s3, 3584')
    a(f's_add_u32 s35, s35, {L3}')
    a(f'v_mul_u32_u24 v{T}, 112, v3')
    a(f'v_lshlrev_b32 v{T+1}, 3, v4')
    a(f'v_sub_u32 v{T+1}, 88, v{T+1}')
    a('v_cmp_eq_u32 vcc, 32, v1')
    a(f'v_mov_b32 v{T+2}, 96')
    a(f'v_cndmask_b32 v{T+1}, v{T+1}, v{T+2}, vcc')
    a(f'v_add3_u32 v{T+1}, v{T+1}, v{T}, s35')
    a(f'v_mov_b32 v{T+2}, 0')
    a(f'v_mov_b32 v{T+3}, 0')
    a(f'ds_write_b64 v{T+1}, {vr(T+2,2)}')
    a(f'v_lshl_add_u32 v58, v4, 4, v{T}')
    a('v_add_u32 v58, s35, v58')
    a(f'v_add_u32 v59, {L3+96}, v{T}')
    a('s_lshl_b32 s35, s3, 5')
    a('v_cmp_eq_u32 vcc, 0, v4')
    for i in range(3):
        a(f'v_add_u32 v{T+2}, s35, v3')
        if i: a(f'v_add_u32 v{T+2}, {128*i}, v{T+2}')
        a(f'v_lshl_add_u32 v{T+5}, v{T+2}, 1, v4')
        a(f'v_mul_u32_u24 v{T+6}, 43691, v{T+5}')
        a(f'v_lshrrev_b32 v{T+6}, 17, v{T+6}')
        a(f'v_mul_u32_u24 v{GA_+i}, {12288-48}, v{T+6}')
        a(f'v_lshl_add_u32 v{GA_+i}, v{T+5}, 4, v{GA_+i}')
        a(f'v_sub_u32 v{T+3}, 640, v{T+2}')
        a(f'v_cndmask_b32 v{T+3}, v{T+3}, v{T+2}, vcc')
        a(f'v_and_b32 v{T+4}, 31, v{T+3}')
        a(f'v_mul_u32_u24 v{T+4}, 112, v{T+4}')
        a(f'v_lshrrev_b32 v{T+3}, 5, v{T+3}')
        a(f'v_lshl_add_u32 v{LW+i}, v{T+3}, 2, v{T+4}')
        a(f'v_add_u32 v{LW+i}, {L3}, v{LW+i}')
        if i == 2:
            a(f'v_mov_b32 v{T+4}, 641')
            a(f'v_cmp_eq_u32 s[46:47], v{T+4}, v{T+5}')
            a(f'v_mov_b32 v{T+3}, {L3+84}')
            a(f'v_cndmask_b32 v{LW+2}, v{LW+2}, v{T+3}, s[46:47]')
            a(f'v_cmp_lt_u32 s[46:47], v{T+4}, v{T+5}')
            a(f'v_cndmask_b32 v{LW+2}, v{LW+2}, v59, s[46:47]')
    a('s_and_b32 s45, s12, 0xc0')
    a('s_lshl_b32 s35, s11, 2')
    a('s_add_u32 s45, s45, s35')
    a('s_and_b32 s35, s10, 3')
    a('s_add_u32 s45, s45, s35')
    a('s_mul_i32 s45, s45, 48')
    a(f's_add_u32 s45, s45, {VP}')
    a(f'v_bfe_u32 v{T}, v3, 1, 1')
    a(f'v_bfe_u32 v{T+1}, v3, 3, 1')
    a(f'v_lshl_add_u32 v{T}, v{T+1}, 1, v{T}')
    a(f'v_lshl_add_u32 v{T}, v{T}, 8, s12')
    a(f'v_cvt_f32_u32 v{T}, v{T}')
    a(f'v_mul_f32 v{T}, {fl(1/2048)}, v{T}')
    a(f'v_bfe_u32 v{T+1}, v3, 2, 1')
    a(f'v_cvt_f32_u32 v{T+1}, v{T+1}')
    a(f'v_mov_b32 v{T+2}, {fl(-0.25)}')
    a(f'v_fmaak_f32 v{T+1}, v{T+2}, v{T+1}, {fl(0.125)}')
    a(f'v_and_b32 v{T+2}, 1, v3')
    a(f'v_cvt_f32_u32 v{T+2}, v{T+2}')
    a(f'v_mul_f32 v{T+2}, v{T+2}, v{T+1}')
    a(f'v_mul_f32 v{T+2}, -2.0, v{T+2}')
    a(f'v_cvt_f32_u32 v{T+7}, v4')
    a(f'v_mul_f32 v{T+7}, 4.0, v{T+7}')
    a(f'v_fma_f32 v{T+2}, v{T+7}, v{T}, v{T+2}')
    for i in range(4):
        a(f'v_{"sub" if i & 1 else "add"}_f32 v{T+3}, v{T+2}, v{T+1}')
        a(f'v_cos_f32 v{T+4}, v{T+3}')
        a(f'v_sin_f32 v{T+5}, v{T+3}')
        a(f'v_add_f32 v{T+2}, v{T+2}, v{T}')
        a(f'v_cvt_pk_bf16_f32 v{A3+i}, v{T+4}, -v{T+5}')
    slot20(a, T, T+1)
    a(f'v_cvt_f32_u32 v{T}, v{T}')
    a(f'v_mul_f32 v{T}, {fl(1/20)}, v{T}')
    a(f'v_mul_f32 v{T+1}, 4.0, v{T}')
    a(f'v_mul_f32 v{T+2}, v{T+7}, v{T}')
    a(f'v_mul_f32 v{T+6}, {fl(10.0)}, v{T}')
    for j in range(3):
        for i in range(4):
            src = T+2
            if j == 2 and i == 1:
                a(f'v_cndmask_b32 v{T+3}, v{T+6}, v{T+2}, vcc'); src = T+3
            fin = cs_pair(a, src, T+4, T+5, MA+4*j+i, MA+12+4*j+i, inv=True)
            a(f'v_add_f32 v{T+2}, v{T+2}, v{T}')
            if i == 3: a(f'v_add_f32 v{T+2}, v{T+2}, v{T+1}')
            fin()
    a(f'v_mul_f32 v{T}, {fl(1/32)}, v{T}')
    a(f'v_mul_f32 v{T+1}, 4.0, v{T}')
    a(f'v_mul_f32 v{T+2}, v{T+7}, v{T}')
    tw3 = []
    for r in range(16):
        tw3 += [f'v_cos_f32 v{TW+r}, v{T+2}', f'v_sin_f32 v{TW+16+r}, v{T+2}', f'v_add_f32 v{T+2}, v{T+2}, v{T}']
        if (r & 3) == 3: tw3.append(f'v_add_f32 v{T+2}, v{T+2}, v{T+1}')
    for l in tw3: a(l)
    a.waitvm('e2')
    poll(a, 'p2', [f'buffer_load_dwordx4 {vr(DV+4*i,4)}, v{GA_+i}, s[16:19], s45 offen sc1' for i in range(3)], range(DV, DV+12), T+3)
    st.stamp()
    for i in range(60):
        l = []
        if i % 4 == 0: l.append(f's_mov_b32 s32, {(i // 4) * 4096}')
        l.append(f'buffer_load_dwordx4 {ar(4*i,4)}, v2, s[28:31], s32 offen offset:{(i%4)*1024} sc1')
        a.bg.append((l, f'b1_{i//3}'))
    a.bg_issue(BURST)
    a.bg_every = BG
    accs = [AR, AI, AX]
    for i in range(3):
        a(f'{M32} {vr(accs[i],16)}, {vr(A3,4)}, {vr(DV+4*i,4)}, 0')
    for i in range(3):
        for p in range(4):
            a(f'v_cvt_pk_bf16_f32 v{PK+4*i+p}, v{accs[i]+2*p}, v{accs[i]+2*p+1}')
            a(f'ds_write_b32 v{LW+i}, v{PK+4*i+p} offset:{3584*p}')
    a('s_waitcnt lgkmcnt(0)')
    a('s_barrier')
    for j in range(3):
        a(f'ds_read_b128 {vr(DV+4*j,4)}, v58 offset:{32*j}')
    misc = []; m = misc.append
    m('s_lshl_b32 s35, s3, 4'); m(f's_add_u32 s35, s35, {LS}')
    m('v_mul_u32_u24 v52, 144, v5'); m('v_add_u32 v52, s35, v52')
    m('v_lshrrev_b32 v53, 2, v5'); m('v_mul_u32_u24 v53, 144, v53'); m('v_and_b32 v54, 3, v5'); m('v_lshl_add_u32 v53, v54, 2, v53')
    m(f's_add_u32 s35, s35, {64*144}'); m('v_add_u32 v53, s35, v53')
    m('v_lshrrev_b32 v55, 3, v0'); m('v_mul_u32_u24 v54, 144, v55'); m('v_and_b32 v56, 7, v0'); m('v_lshl_add_u32 v54, v56, 4, v54'); m(f'v_add_u32 v54, {LS}, v54')
    m('v_and_b32 v55, 3, v55'); m('v_lshlrev_b32 v55, 8, v55'); m('v_lshl_add_u32 v55, v56, 4, v55'); m('v_lshrrev_b32 v56, 5, v0'); m('v_lshl_add_u32 v55, v56, 13, v55')
    m('s_cmp_lt_u32 s3, 2'); m(f's_cselect_b32 s35, 0, {HUGE}'); m('v_add_u32 v56, s35, v55')
    m('s_mul_i32 s45, s10, 163840'); m('s_lshr_b32 s35, s11, 1'); m('s_lshl_b32 s35, s35, 10'); m('s_add_u32 s45, s45, s35')
    m('s_and_b32 s35, s11, 1'); m('s_lshl_b32 s35, s35, 7'); m('s_add_u32 s45, s45, s35')
    for j in range(3):
        a(f's_waitcnt lgkmcnt({2-j})')
        for acc, o in ((AR, 0), (AI, 12)):
            a(f'{M32} {vr(acc,16)}, {vr(DV+4*j,4)}, {vr(MA+o+4*j,4)}, {"0" if j==0 else vr(acc,16)}')
            for _ in range(5):
                if misc: a(misc.pop(0))
    while misc: a(misc.pop(0))
    for r in range(0, 16, 2):
        a(f'v_pk_mul_f32 {vr(AX+r,2)}, {vr(AR+r,2)}, {vr(TW+r,2)}')
        a(f'v_pk_mul_f32 {vr(MA+r,2)}, {vr(AR+r,2)}, {vr(TW+16+r,2)}')
    for r in range(0, 16, 2):
        a(f'v_pk_fma_f32 {vr(AX+r,2)}, {vr(AI+r,2)}, {vr(TW+16+r,2)}, {vr(AX+r,2)} neg_lo:[1,0,0] neg_hi:[1,0,0]')
        a(f'v_pk_fma_f32 {vr(MA+r,2)}, {vr(AI+r,2)}, {vr(TW+r,2)}, {vr(MA+r,2)}')
        a(f'v_cvt_pk_bf16_f32 v{PK+r}, v{MA+r}, v{AX+r}')
        a(f'v_cvt_pk_bf16_f32 v{PK+r+1}, v{MA+r+1}, v{AX+r+1}')
    def unp(X, Fd):
        l = []
        for i in range(5):
            l += [f'v_lshlrev_b32 v{Fd+2*i}, 16, v{X+i}', f'v_and_b32 v{Fd+2*i+1}, s13, v{X+i}']
        return l
    misc = unp(XA, FA) + unp(XB, FB)
    for j in range(4):
        for acc, o in ((AI, 0), (AR, 16)):
            a(f'{M32} {vr(acc,16)}, {vr(PK+4*j,4)}, {vr(B1T+o+4*j,4)}, {"0" if j==0 else vr(acc,16)}')
            for _ in range(3):
                if misc: a(misc.pop(0))
    for i in range(0, 10, 2):
        a(f'v_pk_fma_f32 {vr(FB+i,2)}, {vr(AI+i,2)}, {vr(GAv+i,2)}, {vr(FB+i,2)}')
    for i in range(0, 10, 2):
        a(f'v_pk_fma_f32 {vr(FA+i,2)}, {vr(AR+i,2)}, {vr(GAv+i,2)}, {vr(FA+i,2)}')
    for i in range(5):
        a(f'v_cvt_pk_bf16_f32 v{XA+i}, v{FA+2*i}, v{FA+2*i+1}')
        a(f'v_cvt_pk_bf16_f32 v{XB+i}, v{FB+2*i}, v{FB+2*i+1}')
    XS = 80 * 144
    fill = unp(XA, FA) + unp(XB, FB) + [f'ds_write_b128 v52, {vr(XA,4)} offset:{XS}', f'ds_write_b32 v53, v{XA+4} offset:{XS}',
                                        f'ds_write_b128 v52, {vr(XB,4)} offset:{XS+64}', f'ds_write_b32 v53, v{XB+4} offset:{XS+64}']
    ln_stats(a, XA, XB, T, 46, fill)
    for Fd, b, P0, o in ((FA, 0, PK, 0), (FB, 1, PK+6, 64)):
        for i in range(0, 10, 2):
            a(f'v_pk_fma_f32 {vr(Fd+i,2)}, {vr(Fd+i,2)}, {vr(T,2)}, {vr(T+2,2)} op_sel:[0,{b},{b}] op_sel_hi:[1,{b},{b}]')
        for i in range(0, 10, 2):
            a(f'v_pk_fma_f32 {vr(Fd+i,2)}, {vr(Fd+i,2)}, {vr(CB+i,2)}, {vr(SB+i,2)}')
        for i in range(5):
            a(f'v_cvt_pk_bf16_f32 v{P0+i}, v{Fd+2*i}, v{Fd+2*i+1}')
        a(f'ds_write_b128 v52, {vr(P0,4)} offset:{o}')
        a(f'ds_write_b32 v53, v{P0+4} offset:{o}')
    a.bg_every = 0
    a('s_waitcnt lgkmcnt(0)')
    a('s_barrier')
    for w in range(2):
        for i in range(3):
            a(f'ds_read_b128 {vr(AR+12*w+4*i,4)}, v54 offset:{w*XS + i*32*144}')
    for w, base in ((0, H2), (1, X1)):
        for i in range(3):
            a(f's_add_u32 s35, s45, {base + i*65536}')
            a(f's_waitcnt lgkmcnt({5-3*w-i})')
            a(f'buffer_store_dwordx4 {vr(AR+12*w+4*i,4)}, v{55+(i==2)}, s[16:19], s35 offen sc1', 'e3')
    st.stamp()
    a.bg_issue(BURST2)
    a('s_lshl_b32 s46, s10, 11')
    a(f's_add_u32 s46, s46, {FLG}')
    a('s_lshl_b32 s35, s11, 7')
    a('s_lshl_b32 s47, s3, 2')
    a('s_add_u32 s35, s35, s47')
    a('s_add_u32 s35, s35, s46')
    a('v_mov_b32 v52, 0')
    a('v_mov_b32 v53, 1')
    a('v_and_b32 v54, 15, v1')
    a('v_lshlrev_b32 v54, 7, v54')
    a.waitvm('e3')
    a('s_mov_b64 exec, 1')
    a('buffer_store_dword v53, v52, s[16:19], s35 offen sc1')
    a('s_mov_b64 exec, -1')
    ACC, FR = 40, 136
    a('s_mul_i32 s45, s10, 163840')
    a('s_lshl_b32 s47, s3, 11')
    a('s_add_u32 s45, s45, s47')
    a(f's_add_u32 s45, s45, {H2}')
    a('v_add_u32 v200, 0x10000, v2')
    a('v_add_u32 v201, 0x20000, v2')
    a('s_and_b32 s35, s38, 31')
    a('s_mul_i32 s35, s35, 61440')
    a(f's_add_u32 s35, s35, {WD}')
    st.stamp()
    poll(a, 'p3', ['buffer_load_dwordx4 v[56:59], v54, s[16:19], s46 offen sc1'], range(56, 60), 55, zero_is_bad=True)
    st.stamp()
    a('s_add_u32 s48, s4, s35')
    a('s_addc_u32 s49, s5, 0')
    a('s_mov_b32 s50, 61440')
    a('s_mov_b32 s51, 0x20000')
    def issueA(j):
        a('s_mov_b32 m0, s47')
        a('s_add_u32 s47, s47, 8192')
        a('buffer_load_dwordx4 v2, s[16:19], s45 offen sc1 lds', f'A{j}')
        a('buffer_load_dwordx4 v2, s[16:19], s45 offen offset:1024 sc1 lds', f'A{j}')
        a('s_add_u32 s45, s45, 8192')
    def issueB2(i):
        if i % 4 == 0: a(f's_mov_b32 s32, {(i // 4) * 4096}')
        a(f'buffer_load_dwordx4 {ar(4*i,4)}, v2, s[48:51], s32 offen offset:{(i%4)*1024} sc1', f'b2_{i//5}')
    def reads(j, nts):
        base = j * 8192
        reg = [2, 200, 201][base >> 16]
        for nt in nts:
            a(f'ds_read_b128 {vr(FR+32*(j&1)+4*nt,4)}, v{reg} offset:{(base & 0xffff) + nt*1024}')
    nA = 0
    for j in range(APRE): issueA(nA); nA += 1
    sync_at = G1SYNC
    def sync(j):
        nxt = min([s for s in sync_at if s > j] + [20])
        a.waitvm(f'A{nxt-1}')
        a('s_barrier')
    sync(0)
    reads(0, range(8))
    nB = 0
    b1_pre = 60 - len(a.bg)
    for j in range(20):
        if j + 1 < 20 and (j + 1) in sync_at: sync(j + 1)
        if 3 * j + 2 >= b1_pre: a.waitvm(f'b1_{j}')
        for nt in range(8):
            a(f's_waitcnt lgkmcnt({7 if j + 1 < 20 else 7 - nt})')
            for t in range(3):
                acc = vr(ACC + 12*nt + 4*t, 4)
                a(f'{M16} {acc}, {ar(12*j+4*t,4)}, {vr(FR+32*(j&1)+4*nt,4)}, {"0" if j==0 else acc}')
                if t == 0 and j + 1 < 20: reads(j + 1, [nt])
            if nt in (1, 5) and nA < 20:
                issueA(nA); nA += 1
            elif nt in (3, 7, 2, 6) and a.bg:
                a.bg_issue(1)
            elif nA >= 20 and not a.bg and nt in (1, 3, 5, 7) and nB < 3 * j:
                issueB2(nB); nB += 1
    st.stamp()
    E = 200
    for nt in range(8):
        b = ACC + 12 * nt
        for r in range(4): a(f'v_max_f32 v{b+r}, 0, v{b+r}')
        for r in range(2): a(f'v_max_f32 v{b+8+r}, 0, v{b+8+r}')
        a(f'v_pk_mul_f32 {vr(b,2)}, {vr(b,2)}, {vr(b+4,2)}')
        a(f'v_pk_mul_f32 {vr(b+2,2)}, {vr(b+2,2)}, {vr(b+6,2)}')
        a(f'v_pk_mul_f32 {vr(b+8,2)}, {vr(b+8,2)}, {vr(b+10,2)}')
        a(f'v_cvt_pk_bf16_f32 v{E+2*nt}, v{b}, v{b+1}')
        a(f'v_cvt_pk_bf16_f32 v{E+2*nt+1}, v{b+2}, v{b+3}')
        a(f'v_cvt_pk_bf16_f32 v{E+16+nt}, v{b+8}, v{b+9}')
        if nt & 1:
            qp = nt >> 1
            if nB < 60: issueB2(nB); nB += 1
            a(f'v_permlane16_swap_b32 v{E+4*qp}, v{E+4*qp+2}')
            a(f'v_permlane16_swap_b32 v{E+4*qp+1}, v{E+4*qp+3}')
            a(f'buffer_store_dwordx4 {vr(E+4*qp,4)}, v242, s[16:19], s{40+(qp>>1)} offen offset:{2048*(qp&1)} sc1', 'e4')
        if (nt & 3) == 3:
            c = E + 16 + 4 * (nt >> 2)
            a(f'v_permlane32_swap_b32 v{c}, v{c+2}')
            a(f'v_permlane32_swap_b32 v{c+1}, v{c+3}')
            a(f'v_permlane16_swap_b32 v{c}, v{c+1}')
            a(f'v_permlane16_swap_b32 v{c+2}, v{c+3}')
            a(f'buffer_store_dwordx4 {vr(c,4)}, v243, s[16:19], s{40+(nt>>2)} offen sc1', 'e4')
    st.stamp()
    while nB < 60: issueB2(nB); nB += 1
    XR, GB, ACC, HF = 8, 20, 40, 80
    a('s_lshr_b32 s35, s11, 3')
    a('s_cmp_eq_u32 s35, 0')
    a('s_cselect_b32 s45, s40, s41')
    a('s_mul_i32 s46, s3, 49152')
    a('s_add_u32 s45, s45, s46')
    for i in range(4):
        a(f's_add_u32 s{20+i}, s3, {i+1}')
        a(f's_and_b32 s{20+i}, s{20+i}, 3')
        a(f's_lshl_b32 s{20+i}, s{20+i}, 10')
    a('s_and_b32 s46, s11, 7')
    a('s_lshl_b32 s47, s35, 2')
    a('s_add_u32 s47, s47, s3')
    a('s_lshl_b32 s47, s47, 10')
    a('s_mul_i32 s52, s10, 163840')
    a('s_add_u32 s47, s47, s52')
    a(f's_add_u32 s47, s47, {X1}')
    a('v_and_b32 v224, 15, v1')
    a('v_lshlrev_b32 v224, 4, v224')
    a('v_lshrrev_b32 v225, 4, v1')
    a('v_lshl_add_u32 v226, v4, 13, v224')
    a('v_and_b32 v227, 1, v225')
    a('v_lshl_add_u32 v226, v227, 9, v226')
    a('s_lshl_b32 s52, s46, 14')
    a('s_add_u32 s52, s52, s47')
    a(f'buffer_load_dwordx4 {vr(XR,4)}, v226, s[16:19], s52 offen sc1', 'xg')
    a(f'buffer_load_dwordx4 {vr(XR+4,4)}, v226, s[16:19], s52 offen offset:256 sc1', 'xg')
    a('v_lshl_add_u32 v226, v4, 8, v224')
    a('v_lshl_add_u32 v226, v227, 3, v226')
    a('s_lshr_b32 s52, s46, 1')
    a('s_lshl_b32 s52, s52, 13')
    a('s_add_u32 s47, s47, s52')
    a('s_and_b32 s52, s46, 1')
    a('s_lshl_b32 s52, s52, 9')
    a('s_add_u32 s47, s47, s52')
    a(f's_add_u32 s47, s47, {16*8192}')
    a(f'buffer_load_dwordx2 {vr(XR+8,2)}, v226, s[16:19], s47 offen sc1', 'xg')
    a('v_mul_u32_u24 v227, 80, v225')
    a('s_mul_i32 s52, s46, 320')
    a(f's_add_u32 s52, s52, {MOD + 5*2560}')
    for q in range(5):
        a(f'buffer_load_dwordx4 {vr(GB+4*q,4)}, v227, s[16:19], s52 offen offset:{16*q}', 'xg')
    a('v_and_b32 v228, 7, v1')
    a('v_lshlrev_b32 v228, 8, v228')
    a('v_bfe_u32 v229, v1, 3, 1')
    a('s_andn2_b32 s52, s12, 7')
    a('s_lshl_b32 s53, s3, 1')
    a('s_add_u32 s52, s52, s53')
    a('v_add3_u32 v228, v228, v229, s52')
    a('v_mul_u32_u24 v228, 1280, v228')
    a('v_lshrrev_b32 v227, 1, v227')
    a('s_mul_i32 s52, s46, 160')
    a('v_add3_u32 v228, v228, v227, s52')
    for i in range(3):
        a(f's_mul_i32 s52, s{20+i}, 15')
        a(f's_add_u32 s52, s52, {i*5120}')
        a(f'v_add_u32 v{229+i}, s52, v2')
    a('s_mul_i32 s52, s3, 15360')
    a('v_add_u32 v232, s52, v2')
    for i in range(4): a(f'v_add_u32 v{233+i}, s{20+i}, v2')
    def hl(i, j):
        return f'buffer_load_dwordx4 {vr(HF+48*(i%3)+4*j,4)}, v{233+i}, s[16:19], s{52+j} offen sc1'
    for j in range(12): a(f's_add_u32 s{52+j}, s45, {4096*j}')
    a.waitvm('e4')
    a('s_barrier')
    st.stamp()
    poll(a, 'p4', [hl(0, j) for j in range(12)], range(HF, HF+48), 237)
    st.stamp()
    for j in range(12): a(hl(1, j), 'h1')
    for i in range(4):
        acc = ACC + 20 * (i & 1)
        chk = []
        if i < 3:
            rs = list(range(HF+48*((i+1)%3), HF+48*((i+1)%3)+48))
            chk.append(f'v_max3_u32 v237, v{rs[0]}, v{rs[1]}, v{rs[2]}'); rs = rs[3:]
            while len(rs) >= 2: chk.append(f'v_max3_u32 v237, v237, v{rs[0]}, v{rs[1]}'); rs = rs[2:]
            chk.append(f'v_max_u32 v237, v237, v{rs[0]}')
        for j in range(12):
            if j == 8 and i < 3: a.waitvm(f'h{i+1}')
            for t in range(5):
                c = vr(acc + 4*t, 4)
                a(f'{M16} {c}, {ar(20*j+4*t,4)}, {vr(HF+48*(i%3)+4*j,4)}, {"0" if j==0 else c}')
                if j >= 8 and chk:
                    a(chk.pop(0))
                    if t in (1, 3) and chk: a(chk.pop(0))
            if i < 2: a(hl(i + 2, j), f'h{i+2}')
            if i > 0 and 2 <= j < 7:
                pa = ACC + 20 * ((i - 1) & 1)
                a(f'ds_write_b128 v{229+i-1}, {vr(pa+4*(j-2),4)} offset:{1024*(j-2)}')
        assert not chk
        if i < 3:
            a('v_cmp_eq_u32 vcc, -1, v237')
            a('s_cmp_eq_u64 vcc, 0')
            a(f's_cbranch_scc1 Lok{i}')
            poll(a, f'p5{i}', [hl(i + 1, j) for j in range(12)], range(HF+48*((i+1)%3), HF+48*((i+1)%3)+48), 237)
            for _ in range(12): a.vmq.pop()
            a(f'Lok{i}:')
    a('s_waitcnt lgkmcnt(0)')
    a('s_barrier')
    RD = HF + 48
    for q in range(15):
        a(f'ds_read_b128 {vr(RD+4*q,4)}, v232 offset:{1024*q}')
    acc = ACC + 20; U = ACC
    src = [XR, XR+1, XR+2, XR+3, XR+8, XR+4, XR+5, XR+6, XR+7, XR+9]
    for i in range(10):
        a(f'v_lshlrev_b32 v{U+2*i}, 16, v{src[i]}')
        a(f'v_and_b32 v{U+2*i+1}, s13, v{src[i]}')
    for s in range(3):
        a(f's_waitcnt lgkmcnt({10-5*s})')
        for k in range(0, 20, 2): a(f'v_pk_add_f32 {vr(acc+k,2)}, {vr(acc+k,2)}, {vr(RD+20*s+k,2)}')
    for k in range(0, 20, 2): a(f'v_pk_fma_f32 {vr(U+k,2)}, {vr(acc+k,2)}, {vr(GB+k,2)}, {vr(U+k,2)}')
    for i in range(10): a(f'v_cvt_pk_bf16_f32 v{XR+i}, v{U+2*i}, v{U+2*i+1}')
    a(f'buffer_store_dwordx4 {vr(XR,4)}, v228, s[24:27], 0 offen')
    a(f'buffer_store_dwordx4 {vr(XR+4,4)}, v228, s[24:27], 0 offen offset:16')
    a(f'buffer_store_dwordx2 {vr(XR+8,2)}, v228, s[24:27], 0 offen offset:32')
    st.end()
    a('Lm_end:')
    a('s_endpgm')
    return dict(name='mega_kernel', code=a.finalize(), grid=256, block=256, lds=163840, vgpr=256, agpr=240)

BG1 = int(os.environ.get('BG1', 16)); BG = int(os.environ.get('BG', 16)); BURST = int(os.environ.get('BURST', 6)); BURST2 = int(os.environ.get('BURST2', 8))
APRE = int(os.environ.get('APRE', 4)); G1SYNC = eval(os.environ.get('G1SYNC', '[0,1,2,4,6,8,12,16]'))

def k0():
    a = Asm()
    NMOD, NW, NGU, ND = 240, 64, 0, 0
    TOT = NMOD + NW + NGU + ND
    a(f's_cmp_ge_u32 s2, {TOT}')
    a('s_cbranch_scc1 L0_end')
    st = St(a, 0)
    a(f's_load_dwordx2 s[4:5], s[0:1], {A_WS}')
    a(f's_load_dwordx2 s[6:7], s[0:1], {A_X}')
    a(f's_load_dwordx4 s[8:11], s[0:1], {A_WR}')
    a(f's_load_dwordx4 s[12:15], s[0:1], {A_WG}')
    a(f's_load_dwordx4 s[40:43], s[0:1], {A_WD}')
    a(f's_load_dwordx2 s[20:21], s[0:1], {A_WM}')
    a('v_and_b32 v1, 63, v0')
    a('v_lshrrev_b32 v2, 6, v0')
    a('v_readfirstlane_b32 s3, v2')
    a('s_mov_b32 s22, 0xffff0000')
    a('s_mov_b32 s50, 0x05040100')
    a('s_mov_b32 s51, 0x07060302')
    a('v_lshlrev_b32 v2, 4, v0')
    a('s_waitcnt lgkmcnt(0)')
    srd(a, 16, 4, WS_USED)
    srd(a, 44, 6, 2048 * 1280)
    a('s_bfe_u32 s23, s2, 0x20001')
    a('s_lshl_b32 s23, s23, 6')
    a('s_lshr_b32 s24, s2, 6')
    a('s_lshl_b32 s24, s24, 4')
    a('s_add_u32 s23, s23, s24')
    a('s_and_b32 s24, s2, 1')
    a('s_lshl_b32 s24, s24, 3')
    a('s_add_u32 s23, s23, s24')
    a('s_bfe_u32 s24, s2, 0x30003')
    a('s_add_u32 s23, s23, s24')
    a('s_mul_i32 s23, s23, 1280')
    a('s_cmp_lt_u32 s2, 256')
    a('s_cselect_b32 s46, s46, 0')
    a('v_lshrrev_b32 v65, 5, v0')
    a(f'v_mul_u32_u24 v65, {256*1280}, v65')
    a('v_and_b32 v66, 31, v0')
    a('v_min_u32 v66, 9, v66')
    a('v_lshl_add_u32 v65, v66, 7, v65')
    a('buffer_load_dword v104, v65, s[44:47], s23 offen')
    a(f's_cmp_ge_u32 s2, {NMOD}')
    a('s_cbranch_scc1 L0_w')
    a('s_and_b32 s23, s2, 7')
    a('s_mul_i32 s23, s23, 30')
    a('s_lshr_b32 s24, s2, 3')
    a('s_add_u32 s23, s23, s24')
    srd(a, 28, 20, 640 * 7680)
    srd(a, 32, 42, 1280)
    a('v_lshrrev_b32 v3, 1, v0')
    a('v_and_b32 v4, 1, v0')
    a('v_mul_u32_u24 v5, 7680, v3')
    a('v_lshl_add_u32 v5, v4, 4, v5')
    a('v_lshlrev_b32 v6, 1, v3')
    a('s_lshl_b32 s25, s23, 5')
    for i in range(5):
        a(f'buffer_load_ushort v{8+i}, v6, s[32:35], 0 offen offset:{i*256}', 'c')
    for i in range(5):
        a(f'buffer_load_dwordx4 {vr(16+4*i,4)}, v5, s[28:31], s25 offen', f'w{i}')
        if i < 4: a(f's_add_u32 s25, s25, {128*7680}')
    a('s_getpc_b64 s[36:37]')
    a('Lpc0:')
    a('s_add_u32 s36, s36, mega_kernel-Lpc0')
    a('s_addc_u32 s37, s37, 0')
    a('s_cmp_eq_u32 s24, 0')
    a('s_cselect_b32 s38, Lcode_end-mega_kernel, 0')
    a('s_mov_b32 s39, 0x20000')
    a('v_lshlrev_b32 v7, 7, v0')
    a('buffer_load_dword v64, v7, s[36:39], 0 offen')
    for i in range(4): a(f'v_mov_b32 v{56+i}, -1')
    a('s_mul_i32 s25, s2, 12288')
    for base in (VV,):
        for i in range(3):
            a(f's_add_u32 s26, s25, {base + 4096*i}')
            a('buffer_store_dwordx4 v[56:59], v2, s[16:19], s26 offen sc1')
    for i in range(4): a(f'v_mov_b32 v{60+i}, 0')
    a('s_lshl_b32 s26, s2, 12')
    a(f's_add_u32 s26, s26, {FLG}')
    a('s_cmp_lt_u32 s2, 8')
    a(f's_cselect_b32 s27, 0, {HUGE}')
    a('v_add_u32 v14, s27, v2')
    a('buffer_store_dwordx4 v[60:63], v14, s[16:19], s26 offen sc1')
    a.waitvm('c')
    for i in range(5): a(f'v_lshlrev_b32 v{8+i}, 16, v{8+i}')
    for i in range(5): a(f'v_mul_f32 v{40+i}, 0xbfb8aa3b, v{8+i}')
    for i in range(5): a(f'v_exp_f32 v{40+i}, v{40+i}')
    for i in range(5): a(f'v_add_f32 v{40+i}, 1.0, v{40+i}')
    for i in range(5): a(f'v_rcp_f32 v{40+i}, v{40+i}')
    for i in range(5): a(f'v_mul_f32 v{8+i}, v{8+i}, v{40+i}')
    for i in range(5): a(f'v_cvt_pk_bf16_f32 v{8+i}, v{8+i}, v{8+i}')
    for i in range(5): a(f'v_and_b32 v{8+i}, s22, v{8+i}')
    for i in range(5):
        a.waitvm(f'w{i}')
        for q in range(4):
            a(f'v_lshlrev_b32 v40, 16, v{16+4*i+q}')
            a(f'v_and_b32 v41, s22, v{16+4*i+q}')
            if i == 0:
                a(f'v_mul_f32 v{48+2*q}, v40, v8')
                a(f'v_mul_f32 v{49+2*q}, v41, v8')
            else:
                a(f'v_fmac_f32 v{48+2*q}, v40, v{8+i}')
                a(f'v_fmac_f32 v{49+2*q}, v41, v{8+i}')
    for m in ('quad_perm:[2,3,0,1]', 'row_ror:4', 'row_ror:8'):
        for q in range(8):
            a(f'v_add_f32_dpp v{48+q}, v{48+q}, v{48+q} {m} row_mask:0xf bank_mask:0xf')
    a('v_lshrrev_b32 v7, 4, v0')
    a('v_lshlrev_b32 v7, 6, v7')
    a('v_lshl_add_u32 v7, v4, 5, v7')
    a('v_and_b32 v13, 14, v0')
    a('v_cmp_eq_u32 vcc, 0, v13')
    a('s_and_saveexec_b64 s[26:27], vcc')
    a('ds_write_b128 v7, v[48:51]')
    a('ds_write_b128 v7, v[52:55] offset:16')
    a('s_mov_b64 exec, s[26:27]')
    a('s_waitcnt lgkmcnt(0)')
    a('s_barrier')
    a('s_cmp_lg_u32 s3, 0')
    a('s_cbranch_scc1 L0_fin')
    a('v_and_b32 v13, 15, v0')
    a('v_lshlrev_b32 v7, 2, v13')
    for i in range(16): a(f'ds_read_b32 v{16+i}, v7 offset:{i*64}')
    a('s_mul_i32 s24, s23, 1639')
    a('s_lshr_b32 s24, s24, 16')
    a('s_cmp_eq_u32 s24, 1')
    a('s_cselect_b32 s25, 1.0, 0')
    a('s_cmp_eq_u32 s24, 4')
    a('s_cselect_b32 s25, 1.0, s25')
    a('s_cmp_eq_u32 s24, 2')
    a(f's_cselect_b32 s26, {fl(1.0/(2048*640))}, 1.0')
    a('s_lshl_b32 s24, s23, 6')
    a('s_waitcnt lgkmcnt(0)')
    for stp in (8, 4, 2, 1):
        for i in range(stp): a(f'v_add_f32 v{16+i}, v{16+i}, v{16+i+stp}')
    a('v_cvt_pk_bf16_f32 v16, v16, v16')
    a('v_and_b32 v16, s22, v16')
    a('v_add_f32 v16, s25, v16')
    a('v_cvt_pk_bf16_f32 v16, v16, v16')
    a('v_and_b32 v16, s22, v16')
    a('v_mul_f32 v16, s26, v16')
    a('v_cmp_gt_u32 vcc, 16, v1')
    a('s_and_saveexec_b64 s[26:27], vcc')
    a('buffer_store_dword v16, v7, s[16:19], s24 offen')
    a('s_branch L0_fin')
    def transpose8(src, dst):
        for i in range(8):
            for pp in range(4):
                a(f'v_perm_b32 v{dst+4*i+pp}, v{src+4*(2*pp+1)+(i>>1)}, v{src+4*(2*pp)+(i>>1)}, s{50+(i&1)}')
    a('L0_w:')
    a(f's_sub_u32 s23, s2, {NMOD}')
    srd(a, 28, 8, 2048 * 642)
    srd(a, 32, 10, 2048 * 642)
    a('s_lshr_b32 s24, s23, 3')
    a('s_bfe_u32 s25, s23, 0x20001')
    a('s_lshl_b32 s25, s25, 9')
    a('s_add_u32 s25, s25, s24')
    a('s_and_b32 s26, s23, 1')
    a('s_lshl_b32 s26, s26, 6')
    a('s_add_u32 s25, s25, s26')
    a('s_lshl_b32 s26, s3, 4')
    a('s_add_u32 s25, s25, s26')
    a('s_mul_i32 s25, s25, 642')
    a('s_andn2_b32 s25, s25, 3')
    a('s_and_b32 s24, s24, 1')
    a('v_lshlrev_b32 v3, 4, v1')
    a(f'v_mov_b32 v4, {HUGE}')
    a('v_cmp_gt_u32 vcc, 41, v1')
    a('v_cndmask_b32 v3, v4, v3, vcc')
    for e in range(2):
        for r in range(4):
            a(f's_add_u32 s26, s25, {e*5136 + r*82176}')
            a(f'buffer_load_dwordx4 {vr(8+32*e+8*r,4)}, v3, s[28:31], s26 offen', f'e{e}')
            a(f'buffer_load_dwordx4 {vr(12+32*e+8*r,4)}, v3, s[32:35], s26 offen', f'e{e}')
    a('v_min_u32 v5, 41, v1')
    a('v_mul_u32_u24 v5, 1152, v5')
    a('s_mul_i32 s26, s24, 144')
    a('s_lshl_b32 s27, s3, 5')
    a('s_sub_u32 s27, s27, s26')
    a('s_add_u32 s27, s27, 144')
    a('v_add_u32 v5, s27, v5')
    for e in range(2):
        a.waitvm(f'e{e}')
        transpose8(8 + 32*e, 72)
        for i in range(8):
            a(f'ds_write_b128 v5, {vr(72+4*i,4)} offset:{144*i + 16*e}')
    a('v_lshrrev_b32 v6, 3, v0')
    a('v_and_b32 v7, 7, v0')
    a('v_mul_u32_u24 v5, 144, v6')
    a('v_lshl_add_u32 v5, v7, 4, v5')
    a('v_lshlrev_b32 v6, 13, v6')
    a('v_lshl_add_u32 v6, v7, 4, v6')
    a(f'v_mov_b32 v4, {HUGE}')
    a('v_cmp_gt_u32 vcc, 8, v0')
    a('v_cndmask_b32 v4, v4, v6, vcc')
    a('s_lshl_b32 s26, s23, 7')
    a(f's_add_u32 s26, s26, {WW}')
    a('s_waitcnt lgkmcnt(0)')
    a('s_barrier')
    for it in range(11):
        a(f'ds_read_b128 {vr(8+4*it,4)}, v5 offset:{144 + it*32*144}')
    for it in range(11):
        a(f's_waitcnt lgkmcnt({10-it})')
        a(f'buffer_store_dwordx4 {vr(8+4*it,4)}, v{4 if it == 10 else 6}, s[16:19], s26 offen sc1')
        a(f's_add_u32 s26, s26, {32*8192}')
    a('L0_fin:')
    st.end()
    a('L0_end:')
    a('s_endpgm')
    return dict(name='k0_kernel', code=a.finalize(), grid=TOT, block=256, lds=51200, vgpr=108, agpr=0)

def emit(kernels, path):
    hdr = open('adaLN_cond__spectral_gfnet__glu_gated_reglu__prompt.s.ref').read().split('\n')
    s = '\n'.join(l for l in hdr if l.startswith(';') and '@launch' not in l and 'Override' not in l and 'grid=ceil' not in l) + '\n'
    for k in kernels:
        s += f"; @launch kernel={k['name']} grid=({k['grid']},1,1) block=({k['block']},1,1) lds={k['lds']}\n"
    s += '.amdgcn_target "amdgcn-amd-amdhsa--gfx950"\n.text\n'
    uniq = []
    for k in kernels:
        if k['name'] not in [u['name'] for u in uniq]: uniq.append(k)
    for k in uniq:
        s += f".globl {k['name']}\n.p2align 8\n.type {k['name']},@function\n{k['name']}:\n{k['code']}"
    s += 'Lcode_end:\n'
    s += '.section .rodata,"a"\n'
    for k in uniq:
        acc = (k['vgpr'] + 3) // 4 * 4
        nfv = acc + k['agpr'] if k['agpr'] else k['vgpr']
        s += f""".p2align 6
.amdhsa_kernel {k['name']}
  .amdhsa_next_free_vgpr {nfv}
  .amdhsa_next_free_sgpr {102 if INSTR else 64}
  .amdhsa_accum_offset {acc}
  .amdhsa_group_segment_fixed_size 0
  .amdhsa_kernarg_size 96
  .amdhsa_user_sgpr_count 2
  .amdhsa_user_sgpr_kernarg_segment_ptr 1
  .amdhsa_system_sgpr_workgroup_id_x 1
.end_amdhsa_kernel
"""
    open(path, 'w').write(s)

if __name__ == '__main__':
    out = sys.argv[1] if len(sys.argv) > 1 else 'v2.s'
    emit([k0(), mega()], out)
```

```python
import sys
sys.path.insert(0, 'gen')
from gen3 import *
def empty():
    a = Asm(); a('s_endpgm')
    return dict(name='e_kernel', code=a.finalize(), grid=256, block=256, lds=0, vgpr=8, agpr=0)
def probe(name, off, mb, write):
    a = Asm()
    a('s_cmp_ge_u32 s2, 1024')
    a(f's_cbranch_scc1 Lend_{name}')
    a(f's_load_dwordx2 s[4:5], s[0:1], {A_WS}')
    a('v_lshlrev_b32 v1, 4, v0')
    for i in range(4): a(f'v_mov_b32 v{4+i}, 0')
    a('s_waitcnt lgkmcnt(0)')
    srd(a, 8, 4, mb << 20, off)
    a(f's_mul_i32 s3, s2, {mb*1024}')
    for j in range(mb // 4):
        if write: a(f'buffer_store_dwordx4 v[4:7], v1, s[8:11], s3 offen {write if write != "pl" else ""}')
        else: a(f'buffer_load_dwordx4 v[{8+4*j}:{11+4*j}], v1, s[8:11], s3 offen')
        a('s_add_u32 s3, s3, 4096')
    a('s_waitcnt vmcnt(0)')
    a(f'Lend_{name}:')
    a('s_endpgm')
    return dict(name=name + '_kernel', code=a.finalize(), grid=1024, block=256, lds=0, vgpr=48, agpr=0)
ks = [k0(), mega()]
e = empty()
emit([e] + ks, 'q_e.s')
emit([e, probe('p', 64 << 20, 32, None)] + ks, 'q_r64.s')
emit([e, probe('p', 220 << 20, 32, None)] + ks, 'q_r220.s')
emit([e, probe('p', 64 << 20, 32, 'pl')] + ks, 'q_w64.s')
emit([e, probe('p', 220 << 20, 32, 'pl')] + ks, 'q_w220.s')
emit([e, probe('p', 64 << 20, 32, 'sc1')] + ks, 'q_s64.s')
```

```python
import re

def _expand(tok):
    tok = tok.strip()
    neg = tok.startswith('-')
    if neg: tok = tok[1:]
    m = re.fullmatch(r'abs\((.*)\)', tok)
    if m: tok = m.group(1)
    m = re.fullmatch(r'\|(.*)\|', tok)
    if m: tok = m.group(1)
    m = re.fullmatch(r'([vas])(\d+)', tok)
    if m: return [(m.group(1), int(m.group(2)))]
    m = re.fullmatch(r'([vas])\[(\d+):(\d+)\]', tok)
    if m: return [(m.group(1), i) for i in range(int(m.group(2)), int(m.group(3)) + 1)]
    if tok in ('vcc', 'vcc_lo', 'vcc_hi'): return [('s', 'vcc')]
    if tok in ('exec', 'exec_lo', 'exec_hi'): return [('s', 'exec')]
    if tok == 'm0': return [('s', 'm0')]
    return []

TRANS = ('v_exp_f32', 'v_log_f32', 'v_rcp_f32', 'v_rsq_f32', 'v_sqrt_f32', 'v_sin_f32', 'v_cos_f32', 'v_rcp_iflag_f32')

class Ins:
    def __init__(self, text):
        self.text = text
        t = text.split(';')[0].strip()
        self.label = t.endswith(':')
        self.directive = t.startswith('.')
        self.op = ''
        self.w = set(); self.r = set()
        self.kind = 'other'
        self.dpp = False
        self.srcC = set(); self.srcAB = set()
        self.passes = 0
        self.wide_store_data = set()
        if self.label or self.directive or not t:
            self.kind = 'none'; return
        parts = t.split(None, 1)
        op = parts[0]; self.op = op
        rest = parts[1] if len(parts) > 1 else ''
        ops = [o.strip() for o in re.split(r',(?![^\[]*\])', rest)] if rest else []
        mods = ''
        if ops:
            last = ops[-1].split(None, 1)
            ops[-1] = last[0]
            mods = last[1] if len(last) > 1 else ''
        self.mods = mods
        E = lambda i: _expand(ops[i]) if i < len(ops) else []
        allr = lambda a: [x for i in range(a, len(ops)) for x in E(i)]
        base = re.sub(r'_(e32|e64|dpp|sdwa)$', '', op)
        if op.startswith('v_mfma'):
            self.kind = 'mfma'
            self.w = set(E(0)); self.srcAB = set(E(1) + E(2)); self.srcC = set(E(3)); self.r = self.srcAB | self.srcC
            self.passes = 8 if '32x32x16' in op else 4 if '16x16x32' in op else 16
        elif op.startswith('v_'):
            self.kind = 'valu'
            if 'row_' in mods or 'quad_perm' in mods or 'wave_' in mods or op.endswith('_dpp'): self.dpp = True
            if base.startswith('v_cmp'):
                self.w = set(E(0)); self.r = set(allr(1))
            elif base in ('v_swap_b32', 'v_permlane32_swap_b32', 'v_permlane16_swap_b32'):
                self.w = set(E(0) + E(1)); self.r = set(E(0) + E(1))
            elif base in ('v_add_co_u32', 'v_sub_co_u32', 'v_addc_co_u32', 'v_subb_co_u32', 'v_mad_u64_u32', 'v_div_scale_f32'):
                self.w = set(E(0) + E(1)); self.r = set(allr(2))
            else:
                self.w = set(E(0)); self.r = set(allr(1))
                if base in ('v_fmac_f32', 'v_pk_fmac_f16', 'v_dot2c_f32_bf16', 'v_writelane_b32') or self.dpp or 'op_sel' in mods and False:
                    self.r |= set(E(0))
                if base == 'v_cndmask_b32' and len(ops) == 3: self.r.add(('s', 'vcc'))
        elif op.startswith('buffer_') or op.startswith('global_'):
            self.kind = 'vmem'
            islds = re.search(r'\blds\b', mods) is not None or '_lds_' in op
            if islds:
                self.r = set(allr(0)) | {('s', 'm0')}; self.kind = 'vmem'; self.ldsdma = True
            elif 'store' in op or ('atomic' in op and 'sc0' not in mods):
                self.r = set(allr(0))
                if 'x3' in op or 'x4' in op:
                    self.wide_store_data = set(E(0) if op.startswith('buffer_') else E(1))
            else:
                self.w = set(E(0)); self.r = set(allr(1))
                if 'd16' in op or 'atomic' in op: self.r |= set(E(0))
        elif op.startswith('ds_'):
            self.kind = 'ds'
            if 'write' in op or op.startswith('ds_add') :
                self.r = set(allr(0))
            else:
                self.w = set(E(0)); self.r = set(allr(1))
        elif op.startswith('s_'):
            self.kind = 'salu'
            if op in ('s_nop', 's_waitcnt', 's_barrier', 's_endpgm', 's_branch', 's_setprio', 's_sleep') or op.startswith('s_cbranch'):
                pass
            elif op.startswith('s_cmp') or op.startswith('s_bitcmp'):
                self.r = set(allr(0))
            else:
                self.w = set(E(0)); self.r = set(allr(1))
                if 'saveexec' in op: self.w.add(('s', 'exec'))
        self.base = base
        self.dotAB = set(E(1) + E(2)) if base.startswith('v_dot') else set()
    def states(self):
        if self.kind == 'none': return 0
        if self.op == 's_nop': return int(self.text.split(';')[0].split()[1], 0) + 1
        return 1

def need(p, c):
    n = 0
    vw = {x for x in p.w if x[0] in 'va'}
    sw = {x for x in p.w if x[0] == 's'}
    if p.kind == 'valu':
        if c.kind == 'mfma' and vw & c.r: n = max(n, 2)
        if c.kind == 'valu':
            if c.dpp and vw & c.r: n = max(n, 2)
            if c.base.startswith('v_permlane') and vw & c.r: n = max(n, 2)
            if c.base in ('v_readlane_b32', 'v_readfirstlane_b32') and vw & c.r: n = max(n, 1)
            if p.base in TRANS and c.base not in TRANS and vw & c.r: n = max(n, 1)
            if p.base in TRANS and vw & c.r: n = max(n, 1)
            if sw & c.r:
                n = max(n, 4 if c.base in ('v_readlane_b32', 'v_writelane_b32', 'v_div_fmas_f32') else 2)
            if (('op_sel' in p.mods and not p.base.endswith('_f32')) or 'sdwa' in p.op or 'dst_sel' in p.mods) and vw & (c.r | c.w): n = max(n, 1)
            if p.base.startswith('v_dot') and vw & (c.r | c.w):
                same_c = c.base == p.base and not (vw & c.dotAB)
                if not same_c: n = max(n, 3)
        if c.kind in ('vmem',) and sw & c.r: n = max(n, 5)
        if c.kind == 'salu' and sw & c.r: n = max(n, 1)
        if p.base in TRANS and c.kind in ('vmem', 'ds') and vw & c.r: n = max(n, 1)
    if p.kind == 'mfma':
        big = {4: 8, 8: 12, 16: 20}[p.passes]; mid = {4: 6, 8: 10, 16: 18}[p.passes]; war = {4: 3, 8: 7, 16: 15}[p.passes]
        if c.kind == 'mfma':
            if p.w & c.srcAB: n = max(n, big)
            if p.w & c.srcC:
                if not (p.w == c.srcC and p.passes == c.passes): n = max(n, mid)
            if p.w & c.w and not (p.w & c.srcC): n = max(n, mid)
        elif c.kind in ('valu', 'vmem', 'ds'):
            if p.w & (c.r | c.w): n = max(n, big)
            if c.kind == 'valu' and p.srcC & c.w: n = max(n, war)
            if c.kind in ('vmem', 'ds') and p.srcC & c.w: n = max(n, war)
    if p.kind == 'vmem' and p.wide_store_data:
        if p.wide_store_data & c.w: n = max(n, 2 if c.kind == 'valu' else 1)
    if p.kind == 'salu' and ('s', 'm0') in p.w and c.kind == 'vmem' and ('s', 'm0') in c.r: n = max(n, 1)
    return n

class Asm:
    def __init__(self):
        self.ins = []
        self.vmq = []
        self.lq = []
        self.bg = []
        self.bg_every = 0
        self._cnt = 0
        self._inbg = False
        self._scc = 0
    def __call__(self, text, tag=None):
        for line in text.split('\n'):
            line = line.strip()
            if not line: continue
            ins = Ins(line)
            self.ins.append(ins)
            if ins.kind == 'vmem': self.vmq.append(tag)
            if ins.kind == 'ds': self.lq.append(tag)
            if not self._inbg and ins.kind != 'none':
                if ins.op.startswith('s_cmp') or ins.op.startswith('s_bitcmp'): self._scc = 1
                elif self._scc and (ins.op.startswith('s_cselect') or ins.op.startswith('s_cbranch_scc')): self._scc = 2
                elif self._scc == 2 and ins.kind != 'salu': self._scc = 0
            if ins.kind != 'none' and not self._inbg and self.bg_every and self.bg:
                self._cnt += 2 if ins.base in TRANS else 1
                if ins.kind == 'mfma': self._cnt += ins.passes // 2
                if self._cnt >= self.bg_every and ins.kind != 'salu' and not self._scc:
                    self._cnt = 0; self.bg_issue(1)
    def bg_issue(self, n):
        self._inbg = True
        for _ in range(n):
            if not self.bg: break
            lines, tag = self.bg.pop(0)
            for l in lines: self(l, tag)
        self._inbg = False
    def waitvm(self, tag, extra=''):
        idx = max(i for i, t in enumerate(self.vmq) if t == tag)
        n = len(self.vmq) - 1 - idx
        self._inbg, sv = True, self._inbg
        self(f's_waitcnt vmcnt({min(n, 63)}) {extra}'.strip())
        self._inbg = sv
    def waitl(self, tag):
        idx = max(i for i, t in enumerate(self.lq) if t == tag)
        n = len(self.lq) - 1 - idx
        if getattr(self, '_ldone', -1) >= idx: return
        self._inbg, sv = True, self._inbg
        self(f's_waitcnt lgkmcnt({min(n, 15)})')
        self._inbg = sv
        self._ldone = len(self.lq) - 1 - min(n, 15)
    def vm_empty(self):
        pass
    def finalize(self):
        out = []
        for c in self.ins:
            if c.kind != 'none':
                dist = 0; pad = 0
                for p in reversed(out):
                    if dist >= 20: break
                    if p.kind == 'none': continue
                    n = need(p, c)
                    if n > dist: pad = max(pad, n - dist)
                    dist += p.states()
                while pad > 0:
                    k = min(pad, 16)
                    out.append(Ins(f's_nop {k-1}')); pad -= k
            out.append(c)
        return '\n'.join(('' if i.label or i.directive else '    ') + i.text for i in out) + '\n'

def vr(a, n=1, p='v'):
    return f'{p}{a}' if n == 1 else f'{p}[{a}:{a+n-1}]'
def ar(a, n=1): return vr(a, n, 'a')
def sr(a, n=1): return vr(a, n, 's')
```

```python
import sys, os, struct
sys.path.insert(0, 'gen')
from asmlib import *

GR = 0x4000
TK = 0xC000
WWS = 12288
BLK = 10368
VV = 0x100000
VP = 0x400000
WW = 0x700000
WGU = 0xA00000
WD = 0xE00000
H2 = 0x1000000
X1 = 0x1300000
HH = 0x1600000
WS_USED = 0x1C00000
HUGE = 0x40000000
SL, WST, MPART, MODT, L3 = 40960, 65536, 81920, 131072, 147456
A_X, A_WR, A_WI, A_WG, A_WU, A_WD, A_C, A_WM, A_OUT, A_DBG, A_WS = 0, 8, 16, 32, 40, 48, 56, 64, 72, 80, 88
M32 = 'v_mfma_f32_32x32x16_bf16'
M16 = 'v_mfma_f32_16x16x32_bf16'
def fl(x): return '0x%08x' % struct.unpack('<I', struct.pack('<f', x))[0]
INSTR = os.environ.get('INSTR', '0') == '1'
STAMP = 0x2000000
STSEL = os.environ.get('STSEL', 'main').split(',')
POLL_MAX = 1 << 14

class St:
    def __init__(self, a, kid):
        self.a = a; self.kid = kid; self.n = 0
        if INSTR:
            a('s_memrealtime s[64:65]')
            self.stamp('all')
    def stamp(self, grp='main'):
        if not INSTR: return
        if grp not in STSEL and grp != 'all': return
        assert self.n < 14
        self.a(f's_memtime s[{68+2*self.n}:{69+2*self.n}]'); self.n += 1
    def end(self):
        if not INSTR: return
        a = self.a
        a('s_waitcnt vmcnt(0)')
        self.stamp('all')
        a('s_memrealtime s[66:67]')
        a('s_mov_b64 exec, -1')
        a(f's_add_u32 s96, s4, {STAMP + self.kid * 0x100000}')
        a('s_addc_u32 s97, s5, 0')
        a('s_mov_b32 s98, 0x100000')
        a('s_mov_b32 s99, 0x20000')
        a('s_lshl_b32 s100, s2, 9')
        a('s_lshl_b32 s101, s3, 6')
        a('s_add_u32 s100, s100, s101')
        a('s_waitcnt lgkmcnt(0)')
        a('v_mov_b32 v1, 0')
        for i, r in enumerate([64, 66] + [68 + 2 * i for i in range(self.n)]):
            a(f'v_mov_b32 v2, s{r}')
            a(f'buffer_store_dword v2, v1, s[96:99], s100 offen offset:{4*i}')

def srd(a, d, lo, size, off=0):
    if off:
        a(f's_add_u32 s{d}, s{lo}, {off}')
        a(f's_addc_u32 s{d+1}, s{lo+1}, 0')
    else:
        a(f's_mov_b32 s{d}, s{lo}')
        a(f's_mov_b32 s{d+1}, s{lo+1}')
    a(f's_mov_b32 s{d+2}, {size}')
    a(f's_mov_b32 s{d+3}, 0x20000')

def pkb(r):
    return vr(r & ~1, 2), r & 1

def ln_stats(a, XA, XB, T, st, fill):
    for i in range(5):
        c = lambda r: '0' if i == 0 else f'v{r}'
        a(f'v_dot2_f32_bf16 v{T}, v{XA+i}, s33, {c(T)}')
        a(f'v_dot2_f32_bf16 v{T+1}, v{XB+i}, s33, {c(T+1)}')
        a(f'v_dot2_f32_bf16 v{T+2}, v{XA+i}, v{XA+i}, {c(T+2)}')
        a(f'v_dot2_f32_bf16 v{T+3}, v{XB+i}, v{XB+i}, {c(T+3)}')
    for m in ('quad_perm:[1,0,3,2] row_mask:0xf bank_mask:0xf', 'quad_perm:[2,3,0,1] row_mask:0xf bank_mask:0xf',
              'row_ror:4 row_mask:0xf bank_mask:0xf', 'row_ror:8 row_mask:0xf bank_mask:0xf',
              'row_bcast:15 row_mask:0xa bank_mask:0xf', 'row_bcast:31 row_mask:0xc bank_mask:0xf'):
        for r in range(4):
            a(f'v_add_f32_dpp v{T+r}, v{T+r}, v{T+r} {m}')
    for i in range(4):
        a(f'v_readlane_b32 s{st+i}, v{T+i}, 63')
    a(f'v_mov_b32 v{T+4}, {fl(1/640)}')
    a(f'v_mov_b32 v{T+5}, {fl(1e-5)}')
    fill = list(fill)
    def F(n=1):
        for _ in range(n):
            if fill: a(fill.pop(0))
    a(f'v_pk_mul_f32 {vr(T+6,2)}, {vr(T+4,2)}, {sr(st,2)} op_sel_hi:[0,1]')
    a(f'v_pk_fma_f32 {vr(T,2)}, {vr(T+4,2)}, {sr(st+2,2)}, {vr(T+4,2)} op_sel:[0,0,1] op_sel_hi:[0,1,1]')
    a(f'v_pk_fma_f32 {vr(T,2)}, {vr(T+6,2)}, {vr(T+6,2)}, {vr(T,2)} neg_lo:[1,0,0] neg_hi:[1,0,0]')
    a(f'v_max_f32 v{T}, v{T+5}, v{T}')
    a(f'v_max_f32 v{T+1}, v{T+5}, v{T+1}')
    a(f'v_rsq_f32 v{T}, v{T}')
    a(f'v_rsq_f32 v{T+1}, v{T+1}')
    F(len(fill))
    a(f'v_pk_mul_f32 {vr(T+2,2)}, {vr(T+6,2)}, {vr(T,2)} neg_lo:[1,0] neg_hi:[1,0]')

def load40(a, dst, voff, soff, off, tag):
    a(f'buffer_load_dwordx4 {vr(dst,4)}, v{voff}, s[16:19], {soff} offen offset:{off}', tag)
    a(f'buffer_load_dwordx4 {vr(dst+4,4)}, v{voff}, s[16:19], {soff} offen offset:{off+16}', tag)
    a(f'buffer_load_dwordx2 {vr(dst+8,2)}, v{voff}, s[16:19], {soff} offen offset:{off+32}', tag)

def cs_pair(a, th, t0, t1, dre, dim, inv=False):
    a(f'v_cos_f32 v{t0}, v{th}')
    a(f'v_sin_f32 v{t1}, v{th}')
    def fin():
        if inv:
            a(f'v_cvt_pk_bf16_f32 v{dre}, v{t0}, -v{t1}')
            a(f'v_cvt_pk_bf16_f32 v{dim}, v{t1}, v{t0}')
        else:
            a(f'v_cvt_pk_bf16_f32 v{dre}, v{t0}, v{t1}')
            a(f'v_cvt_pk_bf16_f32 v{dim}, -v{t1}, v{t0}')
    return fin

def slot20(a, dst, t):
    a(f'v_and_b32 v{dst}, 3, v3')
    a(f'v_lshrrev_b32 v{t}, 3, v3')
    a(f'v_lshl_add_u32 v{dst}, v{t}, 2, v{dst}')
    a(f'v_min_u32 v{dst}, 9, v{dst}')
    a(f'v_bfe_u32 v{t}, v3, 2, 1')
    a(f'v_mad_u32_u24 v{dst}, v{t}, 10, v{dst}')

def poll(a, name, loads, regs, t, zero_is_bad=False):
    sv, a.bg_every = a.bg_every, 0
    a(f's_mov_b32 s34, {POLL_MAX}')
    a(f'L{name}:')
    for l in loads: a(l, name)
    a('s_waitcnt vmcnt(0)')
    op = 'min' if zero_is_bad else 'max'
    rs = list(regs)
    a(f'v_{op}3_u32 v{t}, v{rs[0]}, v{rs[1]}, v{rs[2]}'); rs = rs[3:]
    while rs:
        if len(rs) >= 2: a(f'v_{op}3_u32 v{t}, v{t}, v{rs[0]}, v{rs[1]}'); rs = rs[2:]
        else: a(f'v_{op}_u32 v{t}, v{t}, v{rs[0]}'); rs = rs[1:]
    a(f'v_cmp_eq_u32 vcc, {0 if zero_is_bad else -1}, v{t}')
    a('s_sub_u32 s34, s34, 1')
    a(f's_cbranch_scc1 L{name}_x')
    a('s_cmp_lg_u64 vcc, 0')
    a(f's_cbranch_scc1 L{name}')
    a(f'L{name}_x:')
    a.bg_every = sv

JIT = os.environ.get('JIT', '0') == '1'
_jn = [0]
def jitter(a):
    if not JIT: return
    _jn[0] += 1
    sv, a.bg_every = a.bg_every, 0
    a('s_memtime s[64:65]')
    a('s_waitcnt lgkmcnt(0)')
    a('s_mul_i32 s64, s64, 0x9e3779b1')
    a('s_lshr_b32 s64, s64, 25')
    a('s_cmp_lt_u32 s64, 96')
    a(f's_cbranch_scc1 Lj{_jn[0]}x')
    a('s_sub_u32 s64, s64, 95')
    a(f'Lj{_jn[0]}:')
    a('s_sleep 3')
    a('s_sub_u32 s64, s64, 1')
    a('s_cmp_lg_u32 s64, 0')
    a(f's_cbranch_scc1 Lj{_jn[0]}')
    a(f'Lj{_jn[0]}x:')
    a.bg_every = sv

B1T = 8

def poll2(a, name, tag, loads, regs, t):
    sv, a.bg_every = a.bg_every, 0
    a(f's_mov_b32 s34, {POLL_MAX}')
    a.waitvm(tag)
    a(f'L{name}:')
    rs = list(regs)
    a(f'v_max3_u32 v{t}, v{rs[0]}, v{rs[1]}, v{rs[2]}'); rs = rs[3:]
    while rs:
        if len(rs) >= 2: a(f'v_max3_u32 v{t}, v{t}, v{rs[0]}, v{rs[1]}'); rs = rs[2:]
        else: a(f'v_max_u32 v{t}, v{t}, v{rs[0]}'); rs = rs[1:]
    a(f'v_cmp_eq_u32 vcc, -1, v{t}')
    a('s_cmp_eq_u64 vcc, 0')
    a(f's_cbranch_scc1 L{name}_x')
    for l in loads: a(l); a.vmq.pop()
    a('s_waitcnt vmcnt(0)')
    a('s_sub_u32 s34, s34, 1')
    a(f's_cbranch_scc0 L{name}')
    a(f'L{name}_x:')
    a.bg_every = sv

def mega():
    a = Asm()
    a('s_cmp_ge_u32 s2, 256')
    a('s_cbranch_scc1 Lm_end')
    st = St(a, 1); jitter(a)
    a(f's_load_dwordx2 s[56:57], s[0:1], {A_WM}')
    a(f's_load_dwordx4 s[52:55], s[0:1], {A_WD}')
    a(f's_load_dwordx4 s[40:43], s[0:1], {A_OUT}')
    a(f's_load_dwordx2 s[6:7], s[0:1], {A_X}')
    a(f's_load_dwordx2 s[4:5], s[0:1], {A_WS}')
    a(f's_load_dwordx4 s[44:47], s[0:1], {A_WR}')
    a(f's_load_dwordx4 s[48:51], s[0:1], {A_WG}')
    a('s_memrealtime s[8:9]')
    a('s_getpc_b64 s[28:29]')
    a('Lpc0:')
    a('s_lshr_b32 s59, s2, 3')
    a('s_cmp_eq_u32 s59, 1')
    a('s_cselect_b32 s30, Lcode_end-Lpc0, 0')
    a('s_mov_b32 s31, 0x20000')
    a('v_lshlrev_b32 v188, 7, v0')
    a('buffer_load_dword a255, v188, s[28:31], 0 offen')
    a('v_and_b32 v1, 63, v0')
    a('v_lshrrev_b32 v2, 6, v0')
    a('v_readfirstlane_b32 s3, v2')
    a('v_lshlrev_b32 v2, 4, v1')
    a('v_and_b32 v3, 31, v1')
    a('v_lshrrev_b32 v4, 5, v1')
    a('v_lshl_add_u32 v5, v3, 1, v4')
    a('s_bfe_u32 s10, s2, 0x20001')
    a('s_lshl_b32 s10, s10, 2')
    a('s_lshr_b32 s11, s2, 6')
    a('s_add_u32 s10, s10, s11')
    a('s_and_b32 s11, s2, 1')
    a('s_lshl_b32 s11, s11, 3')
    a('s_bfe_u32 s12, s2, 0x30003')
    a('s_add_u32 s11, s11, s12')
    a('s_lshl_b32 s12, s10, 4')
    a('s_add_u32 s12, s12, s11')
    a('s_mov_b32 s13, 0xffff0000')
    a('s_mov_b32 s33, 0x3f803f80')
    a('s_and_b32 s58, s2, 7')
    a('s_lshl_b32 s14, s58, 5')
    a('s_add_u32 s14, s14, s59')
    a('s_min_u32 s15, s14, 213')
    a('s_lshl_b32 s35, s3, 8')
    a('s_add_u32 s35, s35, s12')
    a('s_mul_i32 s36, s35, 1280')
    a(f's_add_u32 s37, s36, {1024*1280}')
    a('v_mul_u32_u24 v6, 20, v5')
    a('v_lshlrev_b32 v7, 1, v6')
    a('s_lshl_b32 s38, s11, 2')
    a('s_add_u32 s38, s38, s3')
    a('s_mul_i32 s60, s58, 10')
    a('s_add_u32 s60, s60, s59')
    a('s_sub_u32 s60, s60, 2')
    a('s_mul_i32 s35, s58, 20')
    a('s_add_u32 s35, s35, s59')
    a('s_add_u32 s35, s35, 68')
    a('s_cmp_lt_u32 s59, 12')
    a('s_cselect_b32 s60, s60, s35')
    a('s_cmp_lt_u32 s59, 2')
    a('s_cselect_b32 s60, 240, s60')
    a(f's_cselect_b32 s30, 0, {640*7680}')
    a('s_mov_b32 s23, 0x20000')
    a('s_mov_b32 s27, 0x20000')
    XA, XB, CA, SA, A2, TW, A3, F, FR, AR, AI, AX, PK, T, AD, WRAW = 40, 46, 52, 62, 72, 96, 116, 120, 140, 160, 176, 192, 208, 220, 232, 244
    T2 = 4 * 2880
    a('v_lshrrev_b32 v240, 1, v0')
    a('v_and_b32 v190, 1, v0')
    a('v_mul_u32_u24 v241, 7680, v240')
    a('v_lshl_add_u32 v241, v190, 4, v241')
    a('v_lshlrev_b32 v240, 1, v240')
    a('s_lshl_b32 s35, s60, 5')
    a(f'v_mov_b32 v189, {HUGE}')
    a('v_mov_b32 v188, 0')
    a('s_or_b32 s32, s2, s3')
    a('s_cmp_eq_u32 s32, 0')
    a('s_cselect_b32 s26, 256, 0')
    a(f'v_cvt_f32_u32 v{T}, v3')
    a(f'v_mul_f32 v{T}, {fl(1/32)}, v{T}')
    a(f'v_cvt_f32_u32 v{T+1}, v4')
    a(f'v_mul_f32 v{T+2}, 4.0, v{T}')
    a(f'v_mul_f32 v{T+3}, v{T+1}, v{T+2}')
    def b1t(j):
        for i in range(4):
            fin = cs_pair(a, T+3, T+4, T+5, B1T+4*j+i, B1T+16+4*j+i)
            a(f'v_add_f32 v{T+3}, v{T+3}, v{T}')
            if i == 3: a(f'v_add_f32 v{T+3}, v{T+3}, v{T+2}')
            fin()
    b1t(0)
    a('s_waitcnt lgkmcnt(0)')
    st.stamp('p0')
    a('s_mov_b32 s28, s56')
    a('s_mov_b32 s29, s57')
    a('s_mov_b32 s20, s54')
    a('s_mov_b32 s21, s55')
    a('s_movk_i32 s22, 1280')
    a('s_mov_b32 s24, s42')
    a('s_mov_b32 s25, s43')
    a('s_bitset1_b32 s9, 31')
    a('v_mov_b32 v186, s8')
    a('v_mov_b32 v187, s9')
    a('s_mov_b64 exec, 1')
    a('buffer_store_dwordx2 v[186:187], v188, s[24:27], 0 offen sc1')
    a('s_mov_b64 exec, -1')
    for i in range(5):
        a(f'buffer_load_ushort v{52+i}, v240, s[20:23], 0 offen offset:{i*256}', 'c')
    for i in range(5):
        a(f'buffer_load_dwordx4 {vr(160+4*i,4)}, v241, s[28:31], s35 offen', f'w{i}')
        if i < 4: a(f's_add_u32 s35, s35, {128*7680}')
    st.stamp('p0')
    srd(a, 16, 4, WS_USED)
    a('s_mov_b32 s20, s6')
    a('s_mov_b32 s21, s7')
    a(f's_mov_b32 s22, {2048*1280}')
    a('s_movk_i32 s26, 256')
    b1t(1)
    a(f'v_and_b32 v{T+4}, 1, v3')
    a(f'v_mul_u32_u24 v{T+4}, 0x8000, v{T+4}')
    a(f'v_lshl_or_b32 v{T+4}, v{T+4}, 16, v{T+4}')
    for k in range(8):
        a(f'v_xor_b32 v{B1T+8+k}, v{T+4}, v{B1T+k}')
        a(f'v_xor_b32 v{B1T+24+k}, v{T+4}, v{B1T+16+k}')
    a(f'buffer_load_dwordx4 {vr(XA,4)}, v6, s[20:23], s36 offen', 'x')
    a(f'buffer_load_dword v{XA+4}, v6, s[20:23], s36 offen offset:16', 'x')
    a(f'buffer_load_dwordx4 {vr(XB,4)}, v6, s[20:23], s37 offen', 'x')
    a(f'buffer_load_dword v{XB+4}, v6, s[20:23], s37 offen offset:16', 'x')
    a.waitvm('c')
    for i in range(5): a(f'v_lshlrev_b32 v{52+i}, 16, v{52+i}')
    for i in range(5): a(f'v_mul_f32 v{57+i}, 0xbfb8aa3b, v{52+i}')
    for i in range(5): a(f'v_exp_f32 v{57+i}, v{57+i}')
    for i in range(5): a(f'v_add_f32 v{57+i}, 1.0, v{57+i}')
    for i in range(5): a(f'v_rcp_f32 v{57+i}, v{57+i}')
    for i in range(5): a(f'v_mul_f32 v{52+i}, v{52+i}, v{57+i}')
    for i in range(5): a(f'v_cvt_pk_bf16_f32 v{52+i}, v{52+i}, v{52+i}')
    for i in range(5): a(f'v_and_b32 v{52+i}, s13, v{52+i}')
    a('s_lshr_b32 s58, s14, 5')
    a('s_bfe_u32 s59, s14, 0x20003')
    a('s_lshl_b32 s59, s59, 9')
    a('s_add_u32 s59, s59, s58')
    a('s_and_b32 s32, s14, 7')
    a('s_lshl_b32 s32, s32, 4')
    a('s_add_u32 s59, s59, s32')
    a('s_lshr_b32 s32, s3, 1')
    a('s_lshl_b32 s32, s32, 3')
    a('s_add_u32 s59, s59, s32')
    a('s_mul_i32 s59, s59, 642')
    a('s_andn2_b32 s59, s59, 3')
    a('s_and_b32 s32, s3, 1')
    a('s_mul_i32 s32, s32, 328')
    a('s_add_u32 s59, s59, s32')
    a('s_and_b32 s34, s58, 1')
    a('v_lshlrev_b32 v191, 3, v1')
    a('v_cmp_gt_u32 vcc, 41, v1')
    a('v_cndmask_b32 v191, v189, v191, vcc')
    a('s_mov_b32 s28, s44')
    a('s_mov_b32 s29, s45')
    a(f's_mov_b32 s30, {2048*642}')
    a('s_mov_b32 s44, s46')
    a('s_mov_b32 s45, s47')
    a(f's_mov_b32 s46, {2048*642}')
    a('s_mov_b32 s47, 0x20000')
    a('s_cmp_ge_u32 s2, 160')
    a('s_cbranch_scc1 Lsd_d')
    a('s_lshr_b32 s39, s2, 3')
    a('s_cmp_ge_u32 s3, 2')
    a('s_cselect_b32 s48, s50, s48')
    a('s_cselect_b32 s49, s51, s49')
    a('s_and_b32 s42, s3, 1')
    a('s_lshl_b32 s42, s42, 1')
    a('s_lshl_b32 s43, s39, 2')
    a('s_add_u32 s42, s42, s43')
    a('s_mul_i32 s43, s42, 10')
    a('s_mul_i32 s54, s42, 20')
    a(f's_sub_u32 s54, s54, {64*20-8}')
    a('s_cmp_lt_u32 s42, 64')
    a('s_cselect_b32 s54, s43, s54')
    a('s_cselect_b32 s56, 2, 320')
    a('s_cselect_b32 s57, 4, 10')
    a('s_cselect_b32 s58, 6, 330')
    a('s_cselect_b32 s35, 10, 20')
    a('s_movk_i32 s55, 3072')
    a('s_mul_i32 s54, s54, 3072')
    a('s_and_b32 s43, s2, 7')
    a('s_mul_i32 s43, s43, 384')
    a('s_add_u32 s54, s54, s43')
    a('s_mul_i32 s35, s35, 3072')
    a(f's_sub_u32 s35, s35, {24*16}')
    a('v_cmp_le_u32 vcc, 24, v1')
    a('v_mov_b32 v62, s35')
    a('v_cndmask_b32 v62, 0, v62, vcc')
    a('v_add_u32 v62, v62, v2')
    a('s_movk_i32 s61, 48')
    a('s_branch Lsd_j')
    a('Lsd_d:')
    a('s_sub_u32 s39, s2, 160')
    a('s_mov_b32 s48, s52')
    a('s_mov_b32 s49, s53')
    a('s_lshr_b32 s42, s39, 1')
    a('s_lshl_b32 s42, s42, 2')
    a('s_add_u32 s42, s42, s3')
    a('s_mul_i32 s54, s42, 10240')
    a('s_and_b32 s42, s39, 1')
    a('s_mul_i32 s42, s42, 640')
    a('s_add_u32 s54, s54, s42')
    a('s_movk_i32 s55, 1280')
    a('s_mov_b32 s56, 2')
    a('s_mov_b32 s57, 4')
    a('s_mov_b32 s58, 6')
    a('v_mov_b32 v62, v2')
    a('s_movk_i32 s61, 40')
    a('Lsd_j:')
    a(f's_mov_b32 s50, {640*3072}')
    a('s_mov_b32 s51, 0x20000')
    for k in range(3): a(f's_mul_i32 s{56+k}, s{56+k}, s55')
    a('v_cmp_gt_u32 vcc, s61, v1')
    a('v_cndmask_b32 v62, v189, v62, vcc')
    a('v_lshrrev_b32 v240, 4, v0')
    a('v_lshlrev_b32 v240, 6, v240')
    a('v_lshl_add_u32 v240, v190, 5, v240')
    a(f'v_add_u32 v240, {MPART}, v240')
    later = []
    for r in range(4):
        l = [(f'buffer_load_dwordx2 {vr(192+4*r,2)}, v191, s[28:31], s59 offen', 'W'), (f'buffer_load_dwordx2 {vr(194+4*r,2)}, v191, s[44:47], s59 offen', 'W')]
        if r < 3: l.append(('s_add_u32 s59, s59, 82176', None))
        later.append(l)
    for e2 in range(4):
        later.append([(f's_add_u32 s35, s54, {"0" if e2 == 0 else "s%d" % (55+e2)}', None), (f'buffer_load_dwordx4 {ar(8*e2,4)}, v62, s[48:51], s35 offen', 'side'),
                      ('s_add_u32 s35, s35, s55', None), (f'buffer_load_dwordx4 {ar(8*e2+4,4)}, v62, s[48:51], s35 offen', 'side')])
    def issue_later(n):
        for _ in range(n):
            if later:
                for l, t in later.pop(0): a(l, t)
    st.stamp('p0')
    for i in range(5):
        a.waitvm(f'w{i}')
        if i == 0: st.stamp('p0')
        if i == NONCE_AT: a('buffer_load_dwordx2 v[64:65], v188, s[24:27], 0 offen sc1', 'nonce')
        if i >= NONCE_AT: issue_later(LATER_N)
        cp, cs_ = pkb(52+i)
        for q in range(4):
            a(f'v_lshlrev_b32 v{58+2*(q&1)}, 16, v{160+4*i+q}')
            a(f'v_and_b32 v{59+2*(q&1)}, s13, v{160+4*i+q}')
            if i == 0: a(f'v_pk_mul_f32 {vr(180+2*q,2)}, {vr(58+2*(q&1),2)}, {cp} op_sel:[0,{cs_}] op_sel_hi:[1,{cs_}]')
            else: a(f'v_pk_fma_f32 {vr(180+2*q,2)}, {vr(58+2*(q&1),2)}, {cp}, {vr(180+2*q,2)} op_sel:[0,{cs_},0] op_sel_hi:[1,{cs_},1]')
    st.stamp('p0')
    for m in ('quad_perm:[2,3,0,1]', 'row_ror:4', 'row_ror:8'):
        for q in range(8):
            a(f'v_add_f32_dpp v{180+q}, v{180+q}, v{180+q} {m} row_mask:0xf bank_mask:0xf')
    a('v_and_b32 v58, 14, v0')
    a('v_cmp_eq_u32 vcc, 0, v58')
    a('s_and_saveexec_b64 s[42:43], vcc')
    a('ds_write_b128 v240, v[180:183]')
    a('ds_write_b128 v240, v[184:187] offset:16')
    a('s_mov_b64 exec, s[42:43]')
    a.waitvm('nonce')
    a('v_readfirstlane_b32 s8, v64')
    a('v_readfirstlane_b32 s9, v65')
    a(f's_mov_b32 s32, {POLL_MAX}')
    a('Lnp:')
    a('s_cmp_lg_u32 s9, 0')
    a('s_cbranch_scc1 Lnp_x')
    a('buffer_load_dwordx2 v[64:65], v188, s[24:27], 0 offen sc1')
    a.vmq.pop()
    a('s_waitcnt vmcnt(0)')
    a('v_readfirstlane_b32 s8, v64')
    a('v_readfirstlane_b32 s9, v65')
    a('s_sub_u32 s32, s32, 1')
    a('s_cbranch_scc0 Lnp')
    a('Lnp_x:')
    a('s_waitcnt lgkmcnt(0)')
    a('s_barrier')
    st.stamp(); st.stamp('p0'); jitter(a)
    a('v_and_b32 v58, 15, v1')
    a(f'v_lshlrev_b32 v59, 2, v58')
    a(f'v_add_u32 v59, {MPART}, v59')
    for i in range(16): a(f'ds_read_b32 v{160+i}, v59 offset:{i*64}')
    a('s_mul_i32 s35, s60, 1639')
    a('s_lshr_b32 s35, s35, 16')
    a('s_cmp_eq_u32 s35, 1')
    a('s_cselect_b32 s32, 1.0, 0')
    a('s_cmp_eq_u32 s35, 4')
    a('s_cselect_b32 s32, 1.0, s32')
    a('s_lshl_b32 s35, s60, 7')
    a(f's_add_u32 s35, s35, {GR}')
    a('v_mov_b32 v177, s8')
    a('v_mov_b32 v179, s9')
    a('v_lshlrev_b32 v58, 3, v58')
    a('s_cmp_eq_u32 s3, 0')
    a(f's_cselect_b32 s42, 0, {HUGE}')
    a('v_add_u32 v58, s42, v58')
    a('s_movk_i32 s42, 0x5555')
    a('s_mov_b32 s43, 0')
    a('s_waitcnt lgkmcnt(0)')
    for stp in (8, 4, 2):
        for i in range(0, stp, 2): a(f'v_pk_add_f32 {vr(160+i,2)}, {vr(160+i,2)}, {vr(160+i+stp,2)}')
    a('v_add_f32 v160, v160, v161')
    a('v_cvt_pk_bf16_f32 v160, v160, v160')
    a('v_and_b32 v160, s13, v160')
    a('v_add_f32 v160, s32, v160')
    a('v_mov_b32_dpp v161, v160 quad_perm:[1,1,3,3] row_mask:0xf bank_mask:0xf')
    a('v_cvt_pk_bf16_f32 v176, v160, v161')
    a('v_cvt_pk_bf16_f32 v178, v160, v161')
    a('s_mov_b64 exec, s[42:43]')
    a('buffer_store_dwordx4 v[176:179], v58, s[16:19], s35 offen sc1')
    a('s_mov_b64 exec, -1')
    st.stamp('p0')
    issue_later(99)
    a('s_mov_b32 s24, s40')
    a('s_mov_b32 s25, s41')
    a(f's_mov_b32 s26, {2048*1280}')
    a(f'v_lshlrev_b32 v{AD+6}, 4, v5')
    a('s_lshl_b32 s32, s3, 5')
    a(f'v_add_u32 v{T+11}, s32, v3')
    a(f'v_cmp_ge_u32 vcc, 64, v{T+11}')
    a(f'v_cndmask_b32 v{AD+7}, v189, v{AD+6}, vcc')
    for i in range(4): a(f'v_mov_b32 v{156+i}, -1')
    a(f's_mul_i32 s45, s12, {BLK}')
    a('s_lshl_b32 s35, s3, 10')
    a('s_add_u32 s45, s45, s35')
    a(f's_add_u32 s45, s45, {VV}')
    a('s_add_u32 s46, s45, 4096')
    a('s_add_u32 s47, s45, 8192')
    a('s_mul_i32 s62, s14, 12288')
    a('s_mul_i32 s35, s3, 3072')
    a('s_add_u32 s62, s62, s35')
    a(f's_add_u32 s62, s62, {VP}')
    for i in range(3):
        a.bg.append(([f'buffer_store_dwordx4 v[156:159], v{AD+6+(i==2)}, s[16:19], s{45+i} offen sc1'], 'p0st'))
    for u in range(3):
        a.bg.append(([f'buffer_store_dwordx4 v[156:159], v2, s[16:19], s62 offen offset:{1024*u} sc1'], 'p0st'))
    a.bg_every = 20
    fill = []
    for i in range(5):
        for X, o in ((XA, 0), (XB, 1)):
            fill.append(f'v_lshlrev_b32 v{F+4*i+o}, 16, v{X+i}')
            fill.append(f'v_and_b32 v{F+4*i+2+o}, s13, v{X+i}')
    ln_stats(a, XA, XB, PK, 52, fill)
    for i in range(10):
        a(f'v_pk_fma_f32 {vr(F+2*i,2)}, {vr(F+2*i,2)}, {vr(PK,2)}, {vr(PK+2,2)}')
    a(f'v_mul_f32 v{T}, {fl(1/20)}, v{T}')
    a(f'v_mul_f32 v{T+1}, {fl(10.0)}, v{T+1}')
    a(f'v_mul_f32 v{T+3}, v{T+1}, v{T}')
    for r in range(10):
        a(f'v_cos_f32 v{TW+r}, v{T+3}')
        a(f'v_sin_f32 v{TW+10+r}, v{T+3}')
        if r < 9: a(f'v_add_f32 v{T+3}, v{T+3}, v{T}')
    a(f'v_mul_u32_u24 v{AD}, 1440, v4')
    a(f'v_lshl_add_u32 v{AD}, v3, 2, v{AD}')
    a('s_mul_i32 s35, s3, 2880')
    a(f'v_add_u32 v{AD}, s35, v{AD}')
    slot20(a, T+6, T+7)
    a(f'v_mul_u32_u24 v{AD+1}, 144, v{T+6}')
    a(f'v_lshl_add_u32 v{AD+1}, v4, 4, v{AD+1}')
    a(f'v_add_u32 v{AD+1}, s35, v{AD+1}')
    a(f'v_cvt_f32_u32 v{T}, v{T+6}')
    a(f'v_mul_f32 v{T}, {fl(1/20)}, v{T}')
    a(f'v_mul_f32 v{T+3}, v{T+1}, v{T}')
    for r in range(10):
        fin = cs_pair(a, T+3, T+4, T+5, A2+r, A2+12+r)
        a(f'v_add_f32 v{T+3}, v{T+3}, v{T}')
        fin()
    for r in (A2+10, A2+11, A2+22, A2+23): a(f'v_mov_b32 v{r}, 0')
    a.bg_issue(99); a.bg_every = 0
    st.stamp('p0')
    a('s_and_b32 s32, s3, 1')
    a('s_mul_i32 s32, s32, 41*144')
    a('s_lshr_b32 s35, s3, 1')
    a('s_lshl_b32 s35, s35, 4')
    a('s_add_u32 s32, s32, s35')
    a(f's_add_u32 s32, s32, {WST}')
    a('v_mul_u32_u24 v241, 144, v1')
    a('v_add_u32 v241, s32, v241')
    a('v_lshrrev_b32 v191, 1, v0')
    a('v_add_u32 v191, s34, v191')
    a('v_lshrrev_b32 v240, 2, v191')
    a('v_mul_u32_u24 v240, 144, v240')
    a('v_and_b32 v191, 3, v191')
    a('v_lshl_add_u32 v240, v191, 5, v240')
    a('v_lshl_add_u32 v240, v190, 4, v240')
    a(f'v_add_u32 v240, {WST}, v240')
    a('v_lshlrev_b32 v63, 4, v0')
    a(f's_mul_i32 s55, s14, {WWS}')
    a(f's_add_u32 s55, s55, {WW}')
    a('s_mov_b32 s50, 0x05040100')
    a('s_mov_b32 s51, 0x07060302')
    a('s_cmp_ge_u32 s2, 160')
    a('s_cbranch_scc1 Lsp_d')
    a('v_cmp_le_u32 vcc, 24, v1')
    a('v_cndmask_b32 v56, 0, 1, vcc')
    a('v_mul_u32_u24 v57, 24, v56')
    a('v_sub_u32 v57, v1, v57')
    a('v_mul_u32_u24 v58, 342, v57')
    a('v_lshrrev_b32 v58, 10, v58')
    a('v_mul_u32_u24 v59, 3, v58')
    a('v_sub_u32 v59, v57, v59')
    a('v_mul_u32_u24 v58, 3072, v58')
    a('v_lshl_add_u32 v58, v56, 8, v58')
    a('s_and_b32 s42, s3, 1')
    a('s_lshl_b32 s42, s42, 9')
    a(f's_add_u32 s42, s42, {SL}')
    a('s_lshr_b32 s43, s3, 1')
    a('s_lshl_b32 s44, s43, 10')
    a('v_lshl_add_u32 v52, v59, 7, s44')
    a('s_lshl_b32 s44, s43, 5')
    a('s_add_u32 s44, s44, 2048')
    a('v_mov_b32 v53, s44')
    a('v_cmp_gt_u32 vcc, 2, v59')
    a('v_cndmask_b32 v52, v53, v52, vcc')
    a('v_add3_u32 v52, v52, v58, s42')
    a('v_mov_b32 v59, 64')
    a('v_cndmask_b32 v59, v59, 32, vcc')
    a('v_add_u32 v53, v52, v59')
    a('v_add_u32 v54, v53, v59')
    a('v_add_u32 v55, v54, v59')
    a('s_mul_i32 s42, s3, 6144')
    a('s_and_b32 s43, s2, 7')
    a('s_lshl_b32 s43, s43, 3')
    a('s_lshl_b32 s44, s3, 1')
    a('s_add_u32 s43, s43, s44')
    a('s_mul_i32 s43, s43, 61440')
    a('s_mul_i32 s44, s39, 3072')
    a('s_add_u32 s43, s43, s44')
    a(f's_add_u32 s52, s43, {WGU}')
    a('s_add_u32 s53, s52, 61440')
    a('s_mov_b32 s54, 0')
    a('s_branch Lsp_j')
    a('Lsp_d:')
    a('s_lshl_b32 s42, s3, 8')
    a(f's_add_u32 s42, s42, {SL}')
    for hq in range(2):
        a(f'v_lshl_add_u32 v56, v1, 1, {hq}')
        a('v_mul_u32_u24 v57, 205, v56')
        a('v_lshrrev_b32 v57, 12, v57')
        a('v_mul_u32_u24 v58, 20, v57')
        a('v_sub_u32 v56, v56, v58')
        a('v_mul_u32_u24 v58, 52, v56')
        a('v_lshrrev_b32 v58, 8, v58')
        a('v_mul_u32_u24 v59, 5, v58')
        a('v_sub_u32 v56, v56, v59')
        a('v_mul_u32_u24 v57, 5120, v57')
        a('v_lshl_add_u32 v57, v56, 10, v57')
        a('v_lshl_add_u32 v57, v58, 6, v57')
        a(f'v_add_u32 v{52+2*hq}, s42, v57')
        a(f'v_add_u32 v{53+2*hq}, 32, v{52+2*hq}')
    a('s_mul_i32 s42, s3, 5120')
    a('s_and_b32 s43, s39, 1')
    a('s_lshl_b32 s43, s43, 2')
    a('s_add_u32 s43, s43, s3')
    a('s_mul_i32 s43, s43, 245760')
    a('s_lshr_b32 s44, s39, 1')
    a('s_mul_i32 s44, s44, 5120')
    a('s_add_u32 s43, s43, s44')
    a(f's_add_u32 s52, s43, {WD}')
    a('s_add_u32 s53, s52, 3072')
    a(f's_mov_b32 s54, {HUGE}')
    a('Lsp_j:'); jitter(a)
    a(f's_add_u32 s42, s42, {SL}')
    a('v_add_u32 v56, s42, v2')
    a('v_add_u32 v57, s54, v2')
    a.waitvm('W')
    a('v_cmp_gt_u32 vcc, 41, v1')
    a('s_and_saveexec_b64 s[42:43], vcc')
    for i in range(4):
        for r in range(4):
            a(f'v_perm_b32 v{140+4*i+r}, v{194+4*r+(i>>1)}, v{192+4*r+(i>>1)}, s{50+(i&1)}')
        a(f'ds_write_b128 v241, {vr(140+4*i,4)} offset:{32*i}')
    a('s_mov_b64 exec, s[42:43]')
    a.waitvm('side')
    st.stamp('p0')
    SR = 160
    for k in range(32): a(f'v_accvgpr_read_b32 v{SR+k}, a{k}')
    a('v_cmp_gt_u32 vcc, s61, v1')
    a('s_and_saveexec_b64 s[42:43], vcc')
    for i in range(8):
        d = 192 + 4 * (i & 3)
        for pp in range(4):
            a(f'v_perm_b32 v{d+pp}, v{SR+4*(2*pp+1)+(i>>1)}, v{SR+4*(2*pp)+(i>>1)}, s{50+(i&1)}')
        a(f'ds_write_b128 v{52+(i>>1)}, {vr(d,4)} offset:{16*(i&1)}')
    a('s_mov_b64 exec, s[42:43]')
    a(f's_movk_i32 s56, {GR}')
    a(f's_movk_i32 s57, {GR+4096}')
    a('s_cmp_lt_u32 s3, 2')
    a(f's_cselect_b32 s58, {GR+8192}, s56')
    a('s_cselect_b32 s35, 4096, 0')
    a('v_lshrrev_b32 v241, 1, v63')
    a(f'v_add_u32 v241, {MODT}, v241')
    a('v_add_u32 v60, s35, v241')
    a(f'v_add_u32 v61, {MODT}, v7')
    gl = [f'buffer_load_dwordx4 {vr(244+4*i,4)}, v63, s[16:19], s{56+i} offen sc1' for i in range(3)]
    a('s_waitcnt lgkmcnt(0)')
    a('s_barrier')
    for l in gl: a(l, 'b0')
    for it in range(3): a(f'ds_read_b128 {vr(160+4*it,4)}, v240 offset:{it*32*144}', 'rb')
    for it in range(6): a(f'ds_read_b128 {vr(172+4*it,4)}, v56 offset:{1024*it}', 'rb')
    a(f'v_mul_u32_u24 v{AD+2}, 5120, v4')
    a(f'v_lshl_add_u32 v{AD+2}, v3, 4, v{AD+2}')
    a('s_lshl_b32 s35, s3, 2')
    a(f's_add_u32 s35, s35, {T2}')
    a(f'v_add_u32 v{AD+2}, s35, v{AD+2}')
    a(f'v_mov_b32 v{T+8}, {fl(0.25)}')
    a(f'v_and_b32 v{T}, 4, v3'); a(f'v_bfe_u32 v{T+1}, v3, 3, 1'); a(f'v_lshl_add_u32 v{T}, v{T+1}, 1, v{T}')
    a(f'v_bfe_u32 v{T+1}, v3, 1, 1'); a(f'v_add_u32 v{T}, v{T}, v{T+1}'); a(f'v_cvt_f32_u32 v{T}, v{T}')
    a(f'v_xor_b32 v{T+1}, v{T+1}, v4')
    a(f'v_and_b32 v{T+2}, 1, v3'); a(f'v_sub_u32 v{T+1}, v{T+2}, v{T+1}'); a(f'v_cvt_f32_i32 v{T+1}, v{T+1}')
    a(f'v_fmaak_f32 v{T+1}, v{T+8}, v{T+1}, {fl(0.125)}')
    a(f'v_cvt_f32_u32 v{T+2}, s12'); a(f'v_mul_f32 v{T+2}, {fl(1/2048)}, v{T+2}')
    a(f'v_fma_f32 v{T+3}, v{T}, v{T+2}, v{T+1}')
    a(f'v_mul_f32 v{T}, {fl(0.125)}, v{T}')
    a(f'v_cvt_f32_u32 v{T+2}, v4'); a(f'v_fmaak_f32 v{T+2}, 0.5, v{T+2}, {fl(-0.25)}')
    a('s_add_u32 s59, s55, 4096')
    a('s_add_u32 s60, s55, 8192')
    a.waitl('rb')
    for it, sg in enumerate((55, 59, 60)):
        a.bg.append(([f'buffer_store_dwordx4 {vr(160+4*it,4)}, v63, s[16:19], s{sg} offen sc1'], 'p0st'))
    for it in range(6):
        a.bg.append(([f'buffer_store_dwordx4 {vr(172+4*it,4)}, v{57 if it == 5 else 2}, s[16:19], s{52+it//3} offen offset:{1024*(it%3)} sc1'], 'p0st'))
    a.bg_every = 5
    for p in range(4):
        a(f'v_add_f32 v{T+5}, v{T+3}, v{T+2}'); a(f'v_cos_f32 v{T+4}, v{T+3}'); a(f'v_cos_f32 v{T+5}, v{T+5}')
        a(f'v_add_f32 v{T+3}, v{T+3}, v{T}'); a(f'v_cvt_pk_bf16_f32 v{A3+p}, v{T+4}, v{T+5}')
    a('v_cmp_eq_u32 vcc, 0, v4')
    a(f'v_sub_u32 v{T+1}, 640, v{T+11}')
    a(f'v_cndmask_b32 v{T+2}, v{T+1}, v{T+11}, vcc')
    a(f'v_mov_b32 v{T+3}, 0xfffff800')
    a(f'v_mov_b32 v{T+4}, 0x800')
    a(f'v_cndmask_b32 v{T+3}, v{T+3}, v{T+4}, vcc')
    a(f'v_lshlrev_b32 v{T+2}, 4, v{T+2}')
    a(f'v_add_u32 v{T+2}, {T2}, v{T+2}')
    a(f'v_add_u32 v{AD+4}, v{T+2}, v{T+3}')
    a(f'v_add_u32 v{AD+5}, v{AD+4}, v{T+3}')
    a(f'v_mov_b32 v{T+4}, {T2}')
    a(f'v_cmp_eq_u32 vcc, 0, v{T+11}')
    a(f'v_cndmask_b32 v{AD+3}, v{T+2}, v{T+4}, vcc')
    a(f'v_mov_b32 v{PK+10}, 0')
    a(f'v_mov_b32 v{PK+11}, 0')
    a.bg_issue(99); a.bg_every = 0
    st.stamp(); st.stamp('p0'); jitter(a)
    a.waitvm('b0')
    a(f's_mov_b32 s34, {POLL_MAX}')
    a('Lp0:')
    for i in range(3):
        r = 244 + 4 * i
        a(f'v_xor_b32 v{r+1}, s8, v{r+1}')
        a(f'v_xor_b32 v{r+3}, s9, v{r+3}')
        a(f'v_xor_b32 v{r+2}, v{r}, v{r+2}')
        a(f'v_or3_b32 v{r+1}, v{r+1}, v{r+2}, v{r+3}')
    a('v_or3_b32 v245, v245, v249, v253')
    a('v_cmp_ne_u32 vcc, 0, v245')
    a('s_cmp_eq_u64 vcc, 0')
    a('s_cbranch_scc1 Lp0_x')
    for l in gl: a(l); a.vmq.pop()
    a('s_waitcnt vmcnt(0)')
    a('s_sub_u32 s34, s34, 1')
    a('s_cbranch_scc0 Lp0')
    a('Lp0_x:')
    st.stamp(); st.stamp('p0'); jitter(a)
    for i in range(3):
        r = 244 + 4 * i
        a(f'v_and_b32 v{r+1}, s13, v{r}')
        a(f'v_lshlrev_b32 v{r}, 16, v{r}')
        a(f'ds_write_b64 v{60 if i == 2 else 241}, {vr(r,2)} offset:{2048*i if i < 2 else 0}')
    a('v_mov_b32 v240, v61')
    a('v_mov_b32 v239, v63') if False else None
    a('s_waitcnt lgkmcnt(0)')
    a('s_barrier')
    for k in range(5):
        a(f'ds_read_b64 {vr(CA+2*k,2)}, v240 offset:{2560 + 8*k}')
        a(f'ds_read_b64 {vr(SA+2*k,2)}, v240 offset:{8*k}')
    for i in range(10):
        c, cs_ = pkb(CA+i); s_, ss = pkb(SA+i)
        if i % 2 == 0: a('s_waitcnt lgkmcnt(8)')
        a(f'v_pk_fma_f32 {vr(F+2*i,2)}, {vr(F+2*i,2)}, {c}, {s_} op_sel:[0,{cs_},{ss}] op_sel_hi:[1,{cs_},{ss}]')
        a(f'v_cvt_pk_bf16_f32 v{F+2*i}, v{F+2*i}, v{F+2*i+1}')
        a(f'ds_write_b32 v{AD}, v{F+2*i} offset:{144*i}')
    a('s_waitcnt lgkmcnt(0)')
    for j in range(4):
        a(f'ds_read_b128 {vr(FR+4*j,4)}, v{AD+1} offset:{32*j}')
    for j in range(4):
        a(f's_waitcnt lgkmcnt({3-j})')
        a(f'{M32} {vr(AR,16)}, {vr(FR+4*j,4)}, {vr(B1T+4*j,4)}, {"0" if j==0 else vr(AR,16)}')
        a(f'{M32} {vr(AI,16)}, {vr(FR+4*j,4)}, {vr(B1T+16+4*j,4)}, {"0" if j==0 else vr(AI,16)}')
    a('v_mov_b32 v244, s8')
    a('v_mov_b32 v245, s9')
    a('s_lshl_b32 s35, s2, 3')
    a('s_cmp_eq_u32 s3, 0')
    a(f's_cselect_b32 s35, s35, {HUGE}')
    a('v_mov_b32 v246, s35')
    a(f's_mov_b32 s56, {TK}')
    for r in range(0, 10, 2):
        a(f'v_pk_mul_f32 {vr(F+r,2)}, {vr(AR+r,2)}, {vr(TW+r,2)}')
        a(f'v_pk_mul_f32 {vr(F+10+r,2)}, {vr(AR+r,2)}, {vr(TW+10+r,2)} neg_lo:[1,0] neg_hi:[1,0]')
    for r in range(0, 10, 2):
        a(f'v_pk_fma_f32 {vr(F+r,2)}, {vr(AI+r,2)}, {vr(TW+10+r,2)}, {vr(F+r,2)}')
        a(f'v_pk_fma_f32 {vr(F+10+r,2)}, {vr(AI+r,2)}, {vr(TW+r,2)}, {vr(F+10+r,2)}')
        a(f'v_cvt_pk_bf16_f32 v{PK+r}, v{F+r}, v{F+10+r}')
        a(f'v_cvt_pk_bf16_f32 v{PK+r+1}, v{F+r+1}, v{F+11+r}')
    for j in range(3):
        for acc, o in ((AR, 0), (AI, 12)):
            a(f'{M32} {vr(acc,16)}, {vr(A2+o+4*j,4)}, {vr(PK+4*j,4)}, {"0" if j==0 else vr(acc,16)}')
    for r in range(10):
        a(f'v_cvt_pk_bf16_f32 v{F+r}, v{AR+r}, v{AI+r}')
        a(f'ds_write_b32 v{AD+2}, v{F+r} offset:{512*r}')
    a('s_waitcnt vmcnt(0) lgkmcnt(0)')
    a('s_barrier')
    for i in range(3):
        a(f'ds_read_b128 {vr(FR+4*i,4)}, v{AD+3+i}')
    a('s_mov_b64 exec, 1')
    a('buffer_store_dwordx2 v[244:245], v246, s[16:19], s56 offen sc1')
    a('s_mov_b64 exec, -1')
    accs = [AR, AI, AX]
    for i in range(3):
        a(f's_waitcnt lgkmcnt({2-i})')
        a(f'{M32} {vr(accs[i],16)}, {vr(A3,4)}, {vr(FR+4*i,4)}, 0')
    for i in range(3):
        for q in range(4):
            a(f'v_cvt_pk_bf16_f32 v{PK+4*i+q}, v{accs[i]+2*q}, v{accs[i]+2*q+1}')
        a(f'buffer_store_dwordx4 {vr(PK+4*i,4)}, v{AD+6+(i==2)}, s[16:19], s{45+i} offen sc1', 'e1')
    st.stamp(); jitter(a)
    G, GA_, LW, M, TW, WR, WI, D, RE, IM, T, P = 40, 52, 55, 60, 68, 76, 88, 100, 112, 124, 136, 160
    LB = 24576
    a('v_and_b32 v58, 15, v1')
    a('v_lshrrev_b32 v59, 4, v1')
    a('v_cvt_f32_u32 v58, v58')
    a('v_cvt_f32_u32 v59, v59')
    a(f'v_mul_f32 v{T}, {fl(1/16)}, v58')
    a(f'v_mul_f32 v59, 4.0, v59')
    a(f'v_mul_f32 v{T+1}, v59, v{T}')
    for i in range(4):
        fin = cs_pair(a, T+1, T+2, T+3, M+i, M+4+i)
        a(f'v_mul_f32 v{T+4}, {fl(1/16)}, v{T+1}')
        a(f'v_add_f32 v{T+1}, v{T+1}, v{T}')
        fin()
        a(f'v_cos_f32 v{TW+i}, v{T+4}')
        a(f'v_sin_f32 v{TW+4+i}, v{T+4}')
    a('s_mul_i32 s35, s3, 192')
    for u in range(3):
        a(f'v_add_u32 v{T}, s35, v1')
        if u: a(f'v_add_u32 v{T}, {64*u}, v{T}')
        a(f'v_mul_u32_u24 v{T+1}, 43691, v{T}')
        a(f'v_lshrrev_b32 v{T+1}, 17, v{T+1}')
        a(f'v_mul_u32_u24 v{T+2}, 3, v{T+1}')
        a(f'v_sub_u32 v{T+2}, v{T}, v{T+2}')
        a(f'v_mul_u32_u24 v{LW+u}, 4144, v{T+2}')
        a(f'v_lshl_add_u32 v{LW+u}, v{T+1}, 2, v{LW+u}')
        a(f'v_add_u32 v{LW+u}, {LB}, v{LW+u}')
        a(f'v_and_b32 v{T+3}, 0xc0, v{T+1}')
        a(f'v_and_b32 v{T+4}, 3, v{T+1}')
        a(f'v_lshl_add_u32 v{T+3}, v{T+4}, 4, v{T+3}')
        a(f'v_bfe_u32 v{T+4}, v{T+1}, 2, 4')
        a(f'v_add_u32 v{T+3}, v{T+3}, v{T+4}')
        a(f'v_mul_u32_u24 v{T+3}, {BLK}, v{T+3}')
        a(f'v_lshl_add_u32 v{T+3}, v{T+2}, 4, v{T+3}')
        a(f'v_mov_b32 v{GA_+u}, v{T+3}')
    a('s_lshl_b32 s35, s3, 10')
    a(f's_add_u32 s35, s35, {LB}')
    a('v_add_u32 v58, s35, v2')
    a('s_mul_i32 s45, s15, 48')
    a(f's_add_u32 s45, s45, {VV}')
    a('v_lshrrev_b32 v240, 1, v1')
    a(f'v_mul_u32_u24 v240, {WWS}, v240')
    a('v_and_b32 v59, 1, v1')
    a('v_lshl_add_u32 v240, v59, 4, v240')
    a('s_mul_i32 s35, s15, 3')
    for u in range(3):
        a(f's_add_u32 s42, s35, {u}')
        a('s_and_b32 s43, s42, 1')
        a('s_lshl_b32 s43, s43, 2')
        a('s_add_u32 s43, s43, s3')
        a(f's_mul_i32 s43, s43, {32*WWS}')
        a('s_lshr_b32 s42, s42, 1')
        a('s_lshl_b32 s42, s42, 5')
        a('s_add_u32 s43, s43, s42')
        a(f's_add_u32 s{52+u}, s43, {WW}')
    a('s_mul_i32 s35, s38, 61440')
    a(f's_add_u32 s35, s35, {WGU}')
    a('s_add_u32 s28, s4, s35')
    a('s_addc_u32 s29, s5, 0')
    a('s_mov_b32 s30, 61440')
    a('s_mul_i32 s40, s38, 3')
    for e in range(3):
        a(f's_add_u32 s41, s40, {e}')
        a(f's_lshr_b32 s{42+e}, s41, 2')
        a(f's_lshl_b32 s{42+e}, s{42+e}, 12')
        a('s_and_b32 s41, s41, 3')
        a('s_lshl_b32 s41, s41, 8')
        a(f's_add_u32 s{42+e}, s{42+e}, s41')
    a(f'v_and_b32 v{T}, 15, v1')
    a(f'v_lshlrev_b32 v{T}, 4, v{T}')
    a(f'v_lshrrev_b32 v{T+1}, 4, v1')
    a(f'v_lshl_add_u32 v243, v{T+1}, 10, v{T}')
    a('v_add_u32 v243, s44, v243')
    a(f'v_and_b32 v{T+1}, 1, v{T+1}')
    a(f'v_lshl_add_u32 v242, v{T+1}, 10, v{T}')
    a(f'v_mov_b32 v{T+2}, s42')
    a(f'v_mov_b32 v{T+3}, s43')
    a('v_cmp_eq_u32 vcc, 0, v4')
    a(f'v_cndmask_b32 v{T+2}, v{T+3}, v{T+2}, vcc')
    a(f'v_add_u32 v242, v242, v{T+2}')
    a(f's_mul_i32 s40, s10, {2*196608}')
    a(f's_add_u32 s40, s40, {HH}')
    a('s_add_u32 s41, s40, 196608')
    a(f'v_mul_u32_u24 v239, 5120, v{T+1}')
    a(f'v_add3_u32 v239, v239, v{T}, v{T}') if False else a(f'v_add_u32 v239, v239, v{T}')
    a(f'v_mov_b32 v{T+2}, {X1-H2+1024}')
    a(f'v_mov_b32 v{T+3}, 1024')
    a(f'v_cndmask_b32 v{T+2}, v{T+2}, v{T+3}, vcc')
    a(f'v_add_u32 v239, v239, v{T+2}')
    a('s_lshl_b32 s48, s12, 3')
    a('s_add_u32 s48, s48, s3')
    a('s_mul_i32 s48, s48, 1280')
    a(f's_add_u32 s48, s48, {H2}')
    a('s_add_u32 s49, s48, 5120')
    a(f's_add_u32 s50, s48, {X1-H2}')
    a('s_add_u32 s51, s50, 5120')
    for i in range(4): a(f'v_mov_b32 v{220+i}, -1')
    a('v_lshlrev_b32 v59, 4, v0')
    a.waitvm('e1')
    st.stamp('e1')
    a(f's_mov_b32 s34, {POLL_MAX}')
    a('Lt2:')
    a('buffer_load_dwordx4 v[172:175], v2, s[16:19], s56 offen sc1')
    a('buffer_load_dwordx4 v[176:179], v2, s[16:19], s56 offen offset:1024 sc1')
    a('s_waitcnt vmcnt(0)')
    for k in range(8): a(f'v_xor_b32 v{172+k}, s{8+(k&1)}, v{172+k}')
    a('v_or3_b32 v172, v172, v173, v174')
    a('v_or3_b32 v175, v175, v176, v177')
    a('v_or3_b32 v172, v172, v178, v179')
    a('v_or_b32 v172, v172, v175')
    a('v_cmp_ne_u32 vcc, 0, v172')
    a('s_sub_u32 s34, s34, 1')
    a('s_cbranch_scc1 Lt2_x')
    a('s_cmp_lg_u64 vcc, 0')
    a('s_cbranch_scc1 Lt2')
    a('Lt2_x:')
    st.stamp('e1'); jitter(a)
    gl = [f'buffer_load_dwordx4 {vr(G+4*u,4)}, v{GA_+u}, s[16:19], s45 offen sc1' for u in range(3)]
    for l in gl: a(l, 'g1')
    for u in range(3):
        a(f'buffer_load_dwordx4 {vr(WRAW+4*u,4)}, v240, s[16:19], s{52+u} offen sc1', 'ww')
    for i in range(5):
        a(f's_mov_b32 s35, {GR + 10240 + 4096*i}')
        a(f'buffer_load_dwordx4 {vr(172+4*i,4)}, v59, s[16:19], s35 offen sc1', 'mb')
    poll2(a, 'p1', 'g1', gl, range(G, G+12), T)
    st.stamp(); st.stamp('e1'); jitter(a)
    for i in range(4): a.bg.append(([f'buffer_store_dwordx4 v[220:223], v238, s[16:19], s{48+i} offen sc1'], 'fill2'))
    a.bg.append((['buffer_store_dwordx4 v[220:223], v239, s[16:19], s48 offen sc1'], 'fill2'))
    for qp in range(4): a.bg.append(([f'buffer_store_dwordx4 v[220:223], v242, s[16:19], s{40+(qp>>1)} offen offset:{2048*(qp&1)} sc1'], 'fill2'))
    for qq in range(2): a.bg.append(([f'buffer_store_dwordx4 v[220:223], v243, s[16:19], s{40+qq} offen sc1'], 'fill2'))
    for i in range(60):
        l = []
        if i % 4 == 0: l.append(f's_mov_b32 s32, {(i // 4) * 4096}')
        l.append(f'buffer_load_dwordx4 {ar(4*i,4)}, v2, s[28:31], s32 offen offset:{(i%4)*1024} sc1')
        a.bg.append((l, f'b1_{i//3}'))
    for u in range(3):
        for v in range(4):
            a(f'ds_write_b32 v{LW+u}, v{G+4*u+v} offset:{1024*v}')
    a.bg_issue(4)
    a('s_waitcnt lgkmcnt(0)')
    a('s_barrier')
    for u in range(3): a(f'ds_read_b128 {vr(D+4*u,4)}, v58 offset:{4144*u}')
    a.bg_issue(3)
    a.bg_every = BGK2
    def mm(dataA, src, outX, outY, waits=False):
        for jb in range(3):
            if waits: a(f's_waitcnt lgkmcnt({2-jb})')
            d = vr(src + 4*jb, 4)
            for out, mt in ((outX, M), (outY, M+4)):
                o = vr(out + 4*jb, 4)
                a(f'{M16} {o}, {d}, {vr(mt,4)}, 0' if dataA else f'{M16} {o}, {vr(mt,4)}, {d}, 0')
    def cmul(cr, ci, sgn, swap):
        n1 = ' neg_lo:[1,0,0] neg_hi:[1,0,0]'
        for jb in range(3):
            for r in (0, 2):
                k = 4*jb + r
                a(f'v_pk_mul_f32 {vr(T+k,2)}, {vr(RE+k,2)}, {vr(cr(jb)+r,2)}')
                a(f'v_pk_mul_f32 {vr(T+12+k,2)}, {vr(IM+k,2)}, {vr(cr(jb)+r,2)}')
            for r in (0, 2):
                k = 4*jb + r
                a(f'v_pk_fma_f32 {vr(T+k,2)}, {vr(IM+k,2)}, {vr(ci(jb)+r,2)}, {vr(T+k,2)}' + (n1 if sgn > 0 else ''))
                a(f'v_pk_fma_f32 {vr(T+12+k,2)}, {vr(RE+k,2)}, {vr(ci(jb)+r,2)}, {vr(T+12+k,2)}' + (n1 if sgn < 0 else ''))
            for r in range(4):
                k = 4*jb + r
                if swap: a(f'v_cvt_pk_bf16_f32 v{P+k}, v{T+12+k}, v{T+k}')
                else: a(f'v_cvt_pk_bf16_f32 v{P+k}, v{T+k}, v{T+12+k}')
    mm(True, D, RE, IM, True)
    cmul(lambda j: TW, lambda j: TW+4, -1, False)
    a.waitvm('ww')
    unp_w = []
    for k in range(12):
        unp_w += [f'v_lshlrev_b32 v{WR+k}, 16, v{WRAW+k}', f'v_and_b32 v{WI+k}, s13, v{WRAW+k}']
    for l in unp_w[:12]: a(l)
    mm(False, P, RE, IM)
    for l in unp_w[12:]: a(l)
    sv, a.bg_every = a.bg_every, 0
    a('s_cmp_eq_u32 s15, 0')
    a('s_cselect_b32 s42, 0.5, 1.0')
    a('s_cmp_eq_u32 s15, 213')
    a('s_cselect_b32 s44, 0.5, 1.0')
    a('s_cselect_b32 s43, 0.5, s42')
    a('s_cmp_eq_u32 s43, 1.0')
    a('s_cbranch_scc1 Lnosc')
    for k in range(12):
        a(f'v_mul_f32 v{WR+k}, s{42+k//4}, v{WR+k}')
        a(f'v_mul_f32 v{WI+k}, s{42+k//4}, v{WI+k}')
    a('Lnosc:')
    a.bg_every = sv
    cmul(lambda j: WR+4*j, lambda j: WI+4*j, +1, True)
    mm(True, P, IM, RE)
    cmul(lambda j: TW, lambda j: TW+4, +1, True)
    mm(False, P, IM, RE)
    a.bg_every = 0
    for u in range(3):
        for r in range(4): a(f'v_cvt_pk_bf16_f32 v{D+4*u+r}, v{RE+4*u+r}, v{IM+4*u+r}')
        a(f'ds_write_b128 v58, {vr(D+4*u,4)} offset:{4144*u}')
    assert not any(t == 'fill2' for _, t in a.bg)
    a.waitvm('fill2')
    for i in range(5):
        r = 172 + 4 * i
        a(f'v_and_b32 v{r+1}, s13, v{r}')
        a(f'v_lshlrev_b32 v{r}, 16, v{r}')
        a(f'ds_write_b64 v241, {vr(r,2)} offset:{5120 + 2048*i}')
    a('s_waitcnt lgkmcnt(0)')
    a('s_barrier')
    for u in range(3):
        for v in range(4):
            a(f'ds_read_b32 v{G+4*u+v}, v{LW+u} offset:{1024*v}')
    for u in range(3):
        a(f's_waitcnt lgkmcnt({8-4*u})')
        a(f'buffer_store_dwordx4 {vr(G+4*u,4)}, v2, s[16:19], s62 offen offset:{1024*u} sc1', 'e2')
    st.stamp(); jitter(a)
    DV, GA_, LW, MA, TW, A3, AR, AI, AX, PK, TI, XA, XB, GAv, CB, SB, T = 172, 52, 55, 60, 84, 116, 120, 136, 152, 184, 40, 200, 206, 40, 212, 224, 244
    FA, FB = 152, 162
    a(f'buffer_load_dwordx4 {vr(XA,4)}, v6, s[20:23], s36 offen', 'x3')
    a(f'buffer_load_dword v{XA+4}, v6, s[20:23], s36 offen offset:16', 'x3')
    a(f'buffer_load_dwordx4 {vr(XB,4)}, v6, s[20:23], s37 offen', 'x3')
    a(f'buffer_load_dword v{XB+4}, v6, s[20:23], s37 offen offset:16', 'x3')
    a.bg_issue(BURST1)
    a(f'v_add_u32 v{T}, {MODT}, v7')
    for dst, vec in ((GAv, 2), (SB, 3), (CB, 4)):
        for k in range(5): a(f'ds_read_b64 {vr(dst+2*k,2)}, v{T} offset:{2560*vec + 8*k}')
    a('s_waitcnt lgkmcnt(10)')
    for k in range(10): a(f'v_mul_f32 v{GAv+k}, {fl(1.0/(2048*640))}, v{GAv+k}')
    a('s_mul_i32 s35, s3, 3584')
    a(f's_add_u32 s35, s35, {L3}')
    a(f'v_mul_u32_u24 v{T}, 112, v3')
    a(f'v_lshlrev_b32 v{T+1}, 3, v4')
    a(f'v_sub_u32 v{T+1}, 88, v{T+1}')
    a('v_cmp_eq_u32 vcc, 32, v1')
    a(f'v_mov_b32 v{T+2}, 96')
    a(f'v_cndmask_b32 v{T+1}, v{T+1}, v{T+2}, vcc')
    a(f'v_add3_u32 v{T+1}, v{T+1}, v{T}, s35')
    a(f'v_mov_b32 v{T+2}, 0')
    a(f'v_mov_b32 v{T+3}, 0')
    a(f'ds_write_b64 v{T+1}, {vr(T+2,2)}')
    a(f'v_lshl_add_u32 v58, v4, 4, v{T}')
    a('v_add_u32 v58, s35, v58')
    a(f'v_add_u32 v59, {L3+96}, v{T}')
    a('s_lshl_b32 s35, s3, 5')
    a('v_cmp_eq_u32 vcc, 0, v4')
    for i in range(3):
        a(f'v_add_u32 v{T+2}, s35, v3')
        if i: a(f'v_add_u32 v{T+2}, {128*i}, v{T+2}')
        a(f'v_lshl_add_u32 v{T+5}, v{T+2}, 1, v4')
        a(f'v_mul_u32_u24 v{T+6}, 43691, v{T+5}')
        a(f'v_lshrrev_b32 v{T+6}, 17, v{T+6}')
        a(f'v_mul_u32_u24 v{GA_+i}, {12288-48}, v{T+6}')
        a(f'v_lshl_add_u32 v{GA_+i}, v{T+5}, 4, v{GA_+i}')
        a(f'v_sub_u32 v{T+3}, 640, v{T+2}')
        a(f'v_cndmask_b32 v{T+3}, v{T+3}, v{T+2}, vcc')
        a(f'v_and_b32 v{T+4}, 31, v{T+3}')
        a(f'v_mul_u32_u24 v{T+4}, 112, v{T+4}')
        a(f'v_lshrrev_b32 v{T+3}, 5, v{T+3}')
        a(f'v_lshl_add_u32 v{LW+i}, v{T+3}, 2, v{T+4}')
        a(f'v_add_u32 v{LW+i}, {L3}, v{LW+i}')
        if i == 2:
            a(f'v_mov_b32 v{T+4}, 641')
            a(f'v_cmp_eq_u32 s[46:47], v{T+4}, v{T+5}')
            a(f'v_mov_b32 v{T+3}, {L3+84}')
            a(f'v_cndmask_b32 v{LW+2}, v{LW+2}, v{T+3}, s[46:47]')
            a(f'v_cmp_lt_u32 s[46:47], v{T+4}, v{T+5}')
            a(f'v_cndmask_b32 v{LW+2}, v{LW+2}, v59, s[46:47]')
    a('s_and_b32 s45, s12, 0xc0')
    a('s_lshl_b32 s35, s11, 2')
    a('s_add_u32 s45, s45, s35')
    a('s_and_b32 s35, s10, 3')
    a('s_add_u32 s45, s45, s35')
    a('s_mul_i32 s45, s45, 48')
    a(f's_add_u32 s45, s45, {VP}')
    a(f'v_bfe_u32 v{T}, v3, 1, 1')
    a(f'v_bfe_u32 v{T+1}, v3, 3, 1')
    a(f'v_lshl_add_u32 v{T}, v{T+1}, 1, v{T}')
    a(f'v_lshl_add_u32 v{T}, v{T}, 8, s12')
    a(f'v_cvt_f32_u32 v{T}, v{T}')
    a(f'v_mul_f32 v{T}, {fl(1/2048)}, v{T}')
    a(f'v_bfe_u32 v{T+1}, v3, 2, 1')
    a(f'v_cvt_f32_u32 v{T+1}, v{T+1}')
    a(f'v_mov_b32 v{T+2}, {fl(-0.25)}')
    a(f'v_fmaak_f32 v{T+1}, v{T+2}, v{T+1}, {fl(0.125)}')
    a(f'v_and_b32 v{T+2}, 1, v3')
    a(f'v_cvt_f32_u32 v{T+2}, v{T+2}')
    a(f'v_mul_f32 v{T+2}, v{T+2}, v{T+1}')
    a(f'v_mul_f32 v{T+2}, -2.0, v{T+2}')
    a(f'v_cvt_f32_u32 v{T+7}, v4')
    a(f'v_mul_f32 v{T+7}, 4.0, v{T+7}')
    a(f'v_fma_f32 v{T+2}, v{T+7}, v{T}, v{T+2}')
    for i in range(4):
        a(f'v_{"sub" if i & 1 else "add"}_f32 v{T+3}, v{T+2}, v{T+1}')
        a(f'v_cos_f32 v{T+4}, v{T+3}')
        a(f'v_sin_f32 v{T+5}, v{T+3}')
        a(f'v_add_f32 v{T+2}, v{T+2}, v{T}')
        a(f'v_cvt_pk_bf16_f32 v{A3+i}, v{T+4}, -v{T+5}')
    slot20(a, T, T+1)
    a(f'v_cvt_f32_u32 v{T}, v{T}')
    a(f'v_mul_f32 v{T}, {fl(1/20)}, v{T}')
    a(f'v_mul_f32 v{T+1}, 4.0, v{T}')
    a(f'v_mul_f32 v{T+2}, v{T+7}, v{T}')
    a(f'v_mul_f32 v{T+6}, {fl(10.0)}, v{T}')
    for j in range(3):
        for i in range(4):
            src = T+2
            if j == 2 and i == 1:
                a(f'v_cndmask_b32 v{T+3}, v{T+6}, v{T+2}, vcc'); src = T+3
            fin = cs_pair(a, src, T+4, T+5, MA+4*j+i, MA+12+4*j+i, inv=True)
            a(f'v_add_f32 v{T+2}, v{T+2}, v{T}')
            if i == 3: a(f'v_add_f32 v{T+2}, v{T+2}, v{T+1}')
            fin()
    a(f'v_mul_f32 v{T}, {fl(1/32)}, v{T}')
    a(f'v_mul_f32 v{T+1}, 4.0, v{T}')
    a(f'v_mul_f32 v{T+2}, v{T+7}, v{T}')
    tw3 = []
    for r in range(16):
        tw3 += [f'v_cos_f32 v{TW+r}, v{T+2}', f'v_sin_f32 v{TW+16+r}, v{T+2}', f'v_add_f32 v{T+2}, v{T+2}, v{T}']
        if (r & 3) == 3: tw3.append(f'v_add_f32 v{T+2}, v{T+2}, v{T+1}')
    for l in tw3: a(l)
    a.waitvm('e2')
    poll(a, 'p2', [f'buffer_load_dwordx4 {vr(DV+4*i,4)}, v{GA_+i}, s[16:19], s45 offen sc1' for i in range(3)], range(DV, DV+12), T+3)
    st.stamp(); jitter(a)
    a.bg_issue(BURST)
    a.bg_every = BG
    accs = [AR, AI, AX]
    for i in range(3):
        a(f'{M32} {vr(accs[i],16)}, {vr(A3,4)}, {vr(DV+4*i,4)}, 0')
    for i in range(3):
        for p in range(4):
            a(f'v_cvt_pk_bf16_f32 v{PK+4*i+p}, v{accs[i]+2*p}, v{accs[i]+2*p+1}')
            a(f'ds_write_b32 v{LW+i}, v{PK+4*i+p} offset:{3584*p}')
    a('s_waitcnt lgkmcnt(0)')
    a('s_barrier')
    for j in range(3):
        a(f'ds_read_b128 {vr(DV+4*j,4)}, v58 offset:{32*j}')
    for j in range(3):
        a(f's_waitcnt lgkmcnt({2-j})')
        for acc, o in ((AR, 0), (AI, 12)):
            a(f'{M32} {vr(acc,16)}, {vr(DV+4*j,4)}, {vr(MA+o+4*j,4)}, {"0" if j==0 else vr(acc,16)}')
    for r in range(0, 16, 2):
        a(f'v_pk_mul_f32 {vr(AX+r,2)}, {vr(AR+r,2)}, {vr(TW+r,2)}')
        a(f'v_pk_mul_f32 {vr(MA+r,2)}, {vr(AR+r,2)}, {vr(TW+16+r,2)}')
    for r in range(0, 16, 2):
        a(f'v_pk_fma_f32 {vr(AX+r,2)}, {vr(AI+r,2)}, {vr(TW+16+r,2)}, {vr(AX+r,2)} neg_lo:[1,0,0] neg_hi:[1,0,0]')
        a(f'v_pk_fma_f32 {vr(MA+r,2)}, {vr(AI+r,2)}, {vr(TW+r,2)}, {vr(MA+r,2)}')
        a(f'v_cvt_pk_bf16_f32 v{PK+r}, v{MA+r}, v{AX+r}')
        a(f'v_cvt_pk_bf16_f32 v{PK+r+1}, v{MA+r+1}, v{AX+r+1}')
    def unp(X, Fd):
        l = []
        for i in range(5):
            l += [f'v_lshlrev_b32 v{Fd+2*i}, 16, v{X+i}', f'v_and_b32 v{Fd+2*i+1}, s13, v{X+i}']
        return l
    misc = unp(XA, FA) + unp(XB, FB)
    for j in range(4):
        for acc, o in ((AI, 0), (AR, 16)):
            a(f'{M32} {vr(acc,16)}, {vr(PK+4*j,4)}, {vr(B1T+o+4*j,4)}, {"0" if j==0 else vr(acc,16)}')
            for _ in range(3):
                if misc: a(misc.pop(0))
    for i in range(0, 10, 2):
        a(f'v_pk_fma_f32 {vr(FB+i,2)}, {vr(AI+i,2)}, {vr(GAv+i,2)}, {vr(FB+i,2)}')
    for i in range(0, 10, 2):
        a(f'v_pk_fma_f32 {vr(FA+i,2)}, {vr(AR+i,2)}, {vr(GAv+i,2)}, {vr(FA+i,2)}')
    for i in range(5):
        a(f'v_cvt_pk_bf16_f32 v{XA+i}, v{FA+2*i}, v{FA+2*i+1}')
        a(f'v_cvt_pk_bf16_f32 v{XB+i}, v{FB+2*i}, v{FB+2*i+1}')
    TL = 196
    a.bg_every = 0
    fill = unp(XA, FA) + unp(XB, FB) + [f'v_mov_b32 v{TL+2}, v{XA+4}', f'v_mov_b32 v{TL+3}, v{XB+4}']
    ln_stats(a, XA, XB, T, 44, fill)
    for Fd, b, P0 in ((FA, 0, PK), (FB, 1, PK+4)):
        for i in range(0, 10, 2):
            a(f'v_pk_fma_f32 {vr(Fd+i,2)}, {vr(Fd+i,2)}, {vr(T,2)}, {vr(T+2,2)} op_sel:[0,{b},{b}] op_sel_hi:[1,{b},{b}]')
        for i in range(0, 10, 2):
            a(f'v_pk_fma_f32 {vr(Fd+i,2)}, {vr(Fd+i,2)}, {vr(CB+i,2)}, {vr(SB+i,2)}')
        for i in range(4):
            a(f'v_cvt_pk_bf16_f32 v{P0+i}, v{Fd+2*i}, v{Fd+2*i+1}')
        a(f'buffer_store_dwordx4 {vr(P0,4)}, v238, s[16:19], s{48+b} offen sc1', 'e3')
        a(f'v_cvt_pk_bf16_f32 v{TL+b}, v{Fd+8}, v{Fd+9}')
    a(f'buffer_store_dwordx4 {vr(XA,4)}, v238, s[16:19], s50 offen sc1')
    a(f'v_permlane32_swap_b32 v{TL}, v{TL+2}')
    a(f'v_permlane32_swap_b32 v{TL+1}, v{TL+3}')
    a(f'buffer_store_dwordx4 {vr(XB,4)}, v238, s[16:19], s51 offen sc1')
    a(f'v_permlane16_swap_b32 v{TL}, v{TL+1}')
    a(f'v_permlane16_swap_b32 v{TL+2}, v{TL+3}')
    a(f'buffer_store_dwordx4 {vr(TL,4)}, v239, s[16:19], s48 offen sc1')
    st.stamp(); jitter(a)
    a.bg_issue(BURST2)
    ACC, FR = 40, 136
    SS = [8, 24, 200]
    a('v_lshrrev_b32 v224, 3, v1')
    a('v_and_b32 v225, 7, v1')
    a('v_xor_b32 v226, v224, v225')
    a('v_mul_u32_u24 v216, 1280, v224')
    a('v_lshl_add_u32 v216, v226, 4, v216')
    a('s_lshl_b32 s44, s10, 2')
    a('s_add_u32 s44, s44, s3')
    a(f's_mul_i32 s44, s44, {32*1280}')
    a(f's_add_u32 s44, s44, {H2}')
    for i in range(1, 4): a(f's_add_u32 s{44+i}, s44, {i*8*1280}')
    a('s_lshl_b32 s35, s3, 12')
    a('v_add_u32 v217, s35, v2')
    a('v_add_u32 v218, 0x10000, v217')
    a('v_lshrrev_b32 v224, 4, v1')
    a('v_xor_b32 v226, v224, v225')
    a('v_and_b32 v227, 15, v1')
    a('v_lshlrev_b32 v227, 7, v227')
    a('v_lshl_add_u32 v219, v226, 4, v227')
    a('v_xor_b32 v220, 64, v219')
    a('v_add_u32 v221, 0x10000, v219')
    a('v_add_u32 v222, 0x10000, v220')
    a('s_and_b32 s35, s38, 31')
    a('s_mul_i32 s35, s35, 61440')
    a(f's_add_u32 s35, s35, {WD}')
    a('s_add_u32 s52, s4, s35')
    a('s_addc_u32 s53, s5, 0')
    a('s_mov_b32 s54, 61440')
    a('s_mov_b32 s55, 0x20000')
    def aloads(p): return [f'buffer_load_dwordx4 {vr(SS[p%3]+4*i,4)}, v216, s[16:19], s{44+i} offen offset:{128*p} sc1' for i in range(4)]
    def awrites(p): return [f'ds_write_b128 v{217 + ((p%8)>>2)}, {vr(SS[p%3]+4*i,4)} offset:{(p%4)*16384 + 1024*i}' for i in range(4)]
    def issueB2(i):
        if i % 4 == 0: a(f's_mov_b32 s32, {(i // 4) * 4096}')
        a(f'buffer_load_dwordx4 {ar(4*i,4)}, v2, s[52:55], s32 offen offset:{(i%4)*1024} sc1', f'b2_{i//5}')
    def read(j, nt):
        p = j >> 1
        a(f'ds_read_b128 {vr(FR+32*(j&1)+4*nt,4)}, v{219 + (j&1) + 2*((p%8)>>2)} offset:{(p%4)*16384 + nt*2048}', f'r{j}_{nt}')
    a.waitvm('e3')
    st.stamp('g1')
    poll(a, 'p3', aloads(0) + aloads(1), range(8, 40), 223)
    st.stamp(); st.stamp('g1'); jitter(a)
    for l in aloads(2): a(l, 'A2')
    for l in awrites(0) + awrites(1): a(l, 'aw1')
    for l in aloads(3): a(l, 'A3')
    for l in aloads(4): a(l, 'A4')
    a.waitl('aw1')
    a('s_barrier')
    st.stamp('g1')
    for nt in range(8): read(0, nt)
    nB = 0
    b1_pre = 60 - len(a.bg)
    for j in range(20):
        p = j >> 1
        extra = []
        if j % 2 == 0 and p + 2 < 10:
            b = p + 2; S = SS[b % 3]
            extra.append(('WAITVM', f'A{b}'))
            rs = list(range(S, S + 16))
            extra.append((f'v_max3_u32 v223, v{rs[0]}, v{rs[1]}, v{rs[2]}', None)); rs = rs[3:]
            while len(rs) >= 2: extra.append((f'v_max3_u32 v223, v223, v{rs[0]}, v{rs[1]}', None)); rs = rs[2:]
            extra.append((f'v_max_u32 v223, v223, v{rs[0]}', None))
            extra.append(('CHECK', b))
            extra += [(l, f'aw{b}') for l in awrites(b)]
            if b + 3 < 10: extra += [(l, f'A{b+3}') for l in aloads(b + 3)]
        if j % 2 == 1 and 1 <= p and p + 1 < 10:
            a.waitl(f'aw{p+1}')
            a('s_barrier')
        if 3 * j + 2 >= b1_pre: a.waitvm(f'b1_{j}')
        if j in (2, 4, 6, 8, 10, 12, 14, 16, 18): st.stamp('g1')
        nb2 = B2R[0] if p + 5 < 10 else B2R[1]
        if j % 2 == 0 and p + 5 < 10: nb2 = 0
        for nt in range(8):
            a.waitl(f'r{j}_{nt}')
            for t in range(3):
                acc = vr(ACC + 12*nt + 4*t, 4)
                a(f'{M16} {acc}, {ar(12*j+4*t,4)}, {vr(FR+32*(j&1)+4*nt,4)}, {"0" if j==0 else acc}')
                if t == 0 and j + 1 < 20: read(j + 1, nt)
                if extra and (t > 0 or len(extra) > 2 * (8 - nt)):
                    l, tg = extra.pop(0)
                    if l == 'WAITVM': a.waitvm(tg)
                    elif l == 'CHECK':
                        a('v_cmp_eq_u32 vcc, -1, v223')
                        a('s_cmp_eq_u64 vcc, 0')
                        a(f's_cbranch_scc1 Lak{tg}')
                        poll(a, f'pa{tg}', aloads(tg), range(SS[tg%3], SS[tg%3]+16), 223)
                        for _ in range(4): a.vmq.pop()
                        a(f'Lak{tg}:')
                    else: a(l, tg)
            if nb2 > 0 and (nt & 1):
                if a.bg: a.bg_issue(1); nb2 -= 1
                elif nB < 3 * j: issueB2(nB); nB += 1; nb2 -= 1
        assert not extra
    st.stamp(); jitter(a)
    E = 200
    for nt in range(8):
        b = ACC + 12 * nt
        for r in range(4): a(f'v_max_f32 v{b+r}, 0, v{b+r}')
        for r in range(2): a(f'v_max_f32 v{b+8+r}, 0, v{b+8+r}')
        a(f'v_pk_mul_f32 {vr(b,2)}, {vr(b,2)}, {vr(b+4,2)}')
        a(f'v_pk_mul_f32 {vr(b+2,2)}, {vr(b+2,2)}, {vr(b+6,2)}')
        a(f'v_pk_mul_f32 {vr(b+8,2)}, {vr(b+8,2)}, {vr(b+10,2)}')
        a(f'v_cvt_pk_bf16_f32 v{E+2*nt}, v{b}, v{b+1}')
        a(f'v_cvt_pk_bf16_f32 v{E+2*nt+1}, v{b+2}, v{b+3}')
        a(f'v_cvt_pk_bf16_f32 v{E+16+nt}, v{b+8}, v{b+9}')
        if nt & 1:
            qp = nt >> 1
            a(f'v_permlane16_swap_b32 v{E+4*qp}, v{E+4*qp+2}')
            a(f'v_permlane16_swap_b32 v{E+4*qp+1}, v{E+4*qp+3}')
            a(f'buffer_store_dwordx4 {vr(E+4*qp,4)}, v242, s[16:19], s{40+(qp>>1)} offen offset:{2048*(qp&1)} sc1', 'e4')
        if (nt & 3) == 3:
            c = E + 16 + 4 * (nt >> 2)
            a(f'v_permlane32_swap_b32 v{c}, v{c+2}')
            a(f'v_permlane32_swap_b32 v{c+1}, v{c+3}')
            a(f'v_permlane16_swap_b32 v{c}, v{c+1}')
            a(f'v_permlane16_swap_b32 v{c+2}, v{c+3}')
            a(f'buffer_store_dwordx4 {vr(c,4)}, v243, s[16:19], s{40+(nt>>2)} offen sc1', 'e4')
    st.stamp('g2')
    while nB < 60: issueB2(nB); nB += 1
    XR, GB, ACC, HF = 8, 20, 40, 80
    a('s_lshr_b32 s35, s11, 3')
    a('s_cmp_eq_u32 s35, 0')
    a('s_cselect_b32 s45, s40, s41')
    a('s_mul_i32 s46, s3, 49152')
    a('s_add_u32 s45, s45, s46')
    for i in range(4):
        a(f's_add_u32 s{20+i}, s3, {i+1}')
        a(f's_and_b32 s{20+i}, s{20+i}, 3')
        a(f's_lshl_b32 s{20+i}, s{20+i}, 10')
    a('s_and_b32 s46, s11, 7')
    a('s_andn2_b32 s47, s12, 7')
    a('s_lshl_b32 s48, s3, 1')
    a('s_add_u32 s47, s47, s48')
    a(f's_mul_i32 s48, s47, {8*1280}')
    a(f's_add_u32 s48, s48, {X1}')
    a('s_lshl_b32 s49, s46, 7')
    a('s_add_u32 s49, s49, s48')
    a('s_and_b32 s50, s46, 3')
    a('s_lshl_b32 s50, s50, 6')
    a('s_add_u32 s48, s48, s50')
    a('s_and_b32 s50, s46, 4')
    a('s_add_u32 s48, s48, s50')
    a('v_and_b32 v224, 15, v1')
    a('v_mul_u32_u24 v224, 1280, v224')
    a('v_lshrrev_b32 v225, 4, v1')
    a('v_lshl_add_u32 v226, v225, 5, v224')
    a('v_lshl_add_u32 v238, v225, 4, v224')
    xl = [f'buffer_load_dwordx4 {vr(XR,4)}, v226, s[16:19], s49 offen sc1', f'buffer_load_dwordx4 {vr(XR+4,4)}, v226, s[16:19], s49 offen offset:16 sc1',
          f'buffer_load_dwordx3 {vr(XR+8,3)}, v238, s[16:19], s48 offen offset:1024 sc1']
    a('v_mul_u32_u24 v227, 80, v225')
    a('s_mul_i32 s50, s46, 320')
    a(f's_add_u32 s50, s50, {MODT + 5*2560}')
    a('v_add_u32 v239, s50, v227')
    for q in range(5): a(f'ds_read_b128 {vr(GB+4*q,4)}, v239 offset:{16*q}')
    a('v_and_b32 v228, 7, v1')
    a('v_lshlrev_b32 v228, 8, v228')
    a('v_bfe_u32 v229, v1, 3, 1')
    a('v_add3_u32 v228, v228, v229, s47')
    a('v_mul_u32_u24 v228, 1280, v228')
    a('v_lshrrev_b32 v227, 1, v227')
    a('s_mul_i32 s50, s46, 160')
    a('v_add3_u32 v228, v228, v227, s50')
    for i in range(3):
        a(f's_mul_i32 s50, s{20+i}, 15')
        a(f's_add_u32 s50, s50, {i*5120}')
        a(f'v_add_u32 v{229+i}, s50, v2')
    a('s_mul_i32 s50, s3, 15360')
    a('v_add_u32 v232, s50, v2')
    for i in range(4): a(f'v_add_u32 v{233+i}, s{20+i}, v2')
    def hl(i, j):
        return f'buffer_load_dwordx4 {vr(HF+48*(i%3)+4*j,4)}, v{233+i}, s[16:19], s{52+j} offen sc1'
    for j in range(12): a(f's_add_u32 s{52+j}, s45, {4096*j}')
    a.waitvm('e4')
    a('s_barrier')
    st.stamp('g2')
    poll(a, 'p4', [hl(0, j) for j in range(12)] + xl, list(range(HF, HF+48)) + list(range(XR, XR+11)), 237)
    st.stamp(); jitter(a)
    st.stamp('g2')
    for j in range(12): a(hl(1, j), 'h1')
    for i in range(4):
        acc = ACC + 20 * (i & 1)
        chk = []
        if i < 3:
            rs = list(range(HF+48*((i+1)%3), HF+48*((i+1)%3)+48))
            chk.append(f'v_max3_u32 v237, v{rs[0]}, v{rs[1]}, v{rs[2]}'); rs = rs[3:]
            while len(rs) >= 2: chk.append(f'v_max3_u32 v237, v237, v{rs[0]}, v{rs[1]}'); rs = rs[2:]
            chk.append(f'v_max_u32 v237, v237, v{rs[0]}')
        for j in range(12):
            if j == 7 and i < 3: a.waitvm(f'h{i+1}')
            for t in range(5):
                c = vr(acc + 4*t, 4)
                a(f'{M16} {c}, {ar(20*j+4*t,4)}, {vr(HF+48*(i%3)+4*j,4)}, {"0" if j==0 else c}')
                if j >= 7 and chk: a(chk.pop(0))
            if i < 2: a(hl(i + 2, j), f'h{i+2}')
            if i > 0 and 2 <= j < 7:
                pa = ACC + 20 * ((i - 1) & 1)
                a(f'ds_write_b128 v{229+i-1}, {vr(pa+4*(j-2),4)} offset:{1024*(j-2)}')
        assert not chk
        st.stamp('g2')
        if i < 3:
            a('v_cmp_eq_u32 vcc, -1, v237')
            a('s_cmp_eq_u64 vcc, 0')
            a(f's_cbranch_scc1 Lok{i}')
            poll(a, f'p5{i}', [hl(i + 1, j) for j in range(12)], range(HF+48*((i+1)%3), HF+48*((i+1)%3)+48), 237)
            for _ in range(12): a.vmq.pop()
            a(f'Lok{i}:')
    a('s_waitcnt lgkmcnt(0)')
    a('s_barrier')
    st.stamp('g2')
    RD = HF + 48
    for q in range(15):
        a(f'ds_read_b128 {vr(RD+4*q,4)}, v232 offset:{1024*q}')
    acc = ACC + 20; U = ACC
    src = [XR, XR+1, XR+2, XR+3, XR+8, XR+4, XR+5, XR+6, XR+7, XR+10]
    for i in range(10):
        a(f'v_lshlrev_b32 v{U+2*i}, 16, v{src[i]}')
        a(f'v_and_b32 v{U+2*i+1}, s13, v{src[i]}')
    for s in range(3):
        a(f's_waitcnt lgkmcnt({10-5*s})')
        for k in range(0, 20, 2): a(f'v_pk_add_f32 {vr(acc+k,2)}, {vr(acc+k,2)}, {vr(RD+20*s+k,2)}')
    for k in range(0, 20, 2): a(f'v_pk_fma_f32 {vr(U+k,2)}, {vr(acc+k,2)}, {vr(GB+k,2)}, {vr(U+k,2)}')
    for i in range(10): a(f'v_cvt_pk_bf16_f32 v{XR+i}, v{U+2*i}, v{U+2*i+1}')
    a(f'buffer_store_dwordx4 {vr(XR,4)}, v228, s[24:27], 0 offen')
    a(f'buffer_store_dwordx4 {vr(XR+4,4)}, v228, s[24:27], 0 offen offset:16')
    a(f'buffer_store_dwordx2 {vr(XR+8,2)}, v228, s[24:27], 0 offen offset:32')
    st.stamp('g2')
    st.end()
    a('Lm_end:')
    a('s_endpgm')
    return dict(name='adaLN_cond__spectral_gfnet__glu_gated_reglu__prompt_kernel', code=a.finalize(), grid=256, block=256, lds=163840, vgpr=256, agpr=256)

E_ = lambda n, d: eval(os.environ.get(n, str(d)))
BG = E_('BG', 16); BGK2 = E_('BGK2', 12); BURST = E_('BURST', 6); BURST1 = E_('BURST1', 8); BURST2 = E_('BURST2', 4)
NONCE_AT = E_('NONCE_AT', 1); LATER_N = E_('LATER_N', 2); B2R = E_('B2R', (4, 4))

def emit(kernels, path):
    hdr = open('adaLN_cond__spectral_gfnet__glu_gated_reglu__prompt.s.ref').read().split('\n')
    s = '\n'.join(l for l in hdr if l.startswith(';') and '@launch' not in l and 'Override' not in l and 'grid=ceil' not in l) + '\n'
    for k in kernels:
        s += f"; @launch {'kernel=' + k['name'] + ' ' if len(kernels) > 1 else ''}grid=({k['grid']},1,1) block=({k['block']},1,1) lds={k['lds']}\n"
    s += '.amdgcn_target "amdgcn-amd-amdhsa--gfx950"\n.text\n'
    uniq = []
    for k in kernels:
        if k['name'] not in [u['name'] for u in uniq]: uniq.append(k)
    for k in uniq:
        s += f".globl {k['name']}\n.p2align 8\n.type {k['name']},@function\n{k['name']}:\n{k['code']}"
    s += 'Lcode_end:\n'
    s += '.section .rodata,"a"\n'
    for k in uniq:
        acc = (k['vgpr'] + 3) // 4 * 4
        nfv = acc + k['agpr'] if k['agpr'] else k['vgpr']
        s += f""".p2align 6
.amdhsa_kernel {k['name']}
  .amdhsa_next_free_vgpr {nfv}
  .amdhsa_next_free_sgpr {102 if INSTR or JIT else 64}
  .amdhsa_accum_offset {acc}
  .amdhsa_group_segment_fixed_size 0
  .amdhsa_kernarg_size 96
  .amdhsa_user_sgpr_count 2
  .amdhsa_user_sgpr_kernarg_segment_ptr 1
  .amdhsa_system_sgpr_workgroup_id_x 1
.end_amdhsa_kernel
"""
    open(path, 'w').write(s)

if __name__ == '__main__':
    out = sys.argv[1] if len(sys.argv) > 1 else 'v5.s'
    emit([mega()], out)
```

```python
import re

def _expand(tok):
    tok = tok.strip()
    neg = tok.startswith('-')
    if neg: tok = tok[1:]
    m = re.fullmatch(r'abs\((.*)\)', tok)
    if m: tok = m.group(1)
    m = re.fullmatch(r'\|(.*)\|', tok)
    if m: tok = m.group(1)
    m = re.fullmatch(r'([vas])(\d+)', tok)
    if m: return [(m.group(1), int(m.group(2)))]
    m = re.fullmatch(r'([vas])\[(\d+):(\d+)\]', tok)
    if m: return [(m.group(1), i) for i in range(int(m.group(2)), int(m.group(3)) + 1)]
    if tok in ('vcc', 'vcc_lo', 'vcc_hi'): return [('s', 'vcc')]
    if tok in ('exec', 'exec_lo', 'exec_hi'): return [('s', 'exec')]
    if tok == 'm0': return [('s', 'm0')]
    return []

TRANS = ('v_exp_f32', 'v_log_f32', 'v_rcp_f32', 'v_rsq_f32', 'v_sqrt_f32', 'v_sin_f32', 'v_cos_f32', 'v_rcp_iflag_f32')

class Ins:
    def __init__(self, text):
        self.text = text
        t = text.split(';')[0].strip()
        self.label = t.endswith(':')
        self.directive = t.startswith('.')
        self.op = ''
        self.w = set(); self.r = set()
        self.kind = 'other'
        self.dpp = False
        self.srcC = set(); self.srcAB = set()
        self.passes = 0
        self.wide_store_data = set()
        if self.label or self.directive or not t:
            self.kind = 'none'; return
        parts = t.split(None, 1)
        op = parts[0]; self.op = op
        rest = parts[1] if len(parts) > 1 else ''
        ops = [o.strip() for o in re.split(r',(?![^\[]*\])', rest)] if rest else []
        mods = ''
        if ops:
            last = ops[-1].split(None, 1)
            ops[-1] = last[0]
            mods = last[1] if len(last) > 1 else ''
        self.mods = mods
        E = lambda i: _expand(ops[i]) if i < len(ops) else []
        allr = lambda a: [x for i in range(a, len(ops)) for x in E(i)]
        base = re.sub(r'_(e32|e64|dpp|sdwa)$', '', op)
        if op.startswith('v_mfma'):
            self.kind = 'mfma'
            self.w = set(E(0)); self.srcAB = set(E(1) + E(2)); self.srcC = set(E(3)); self.r = self.srcAB | self.srcC
            self.passes = 8 if '32x32x16' in op else 4 if '16x16x32' in op else 16
        elif op.startswith('v_'):
            self.kind = 'valu'
            if 'row_' in mods or 'quad_perm' in mods or 'wave_' in mods or op.endswith('_dpp'): self.dpp = True
            if base.startswith('v_cmp'):
                self.w = set(E(0)); self.r = set(allr(1))
            elif base in ('v_swap_b32', 'v_permlane32_swap_b32', 'v_permlane16_swap_b32'):
                self.w = set(E(0) + E(1)); self.r = set(E(0) + E(1))
            elif base in ('v_add_co_u32', 'v_sub_co_u32', 'v_addc_co_u32', 'v_subb_co_u32', 'v_mad_u64_u32', 'v_div_scale_f32'):
                self.w = set(E(0) + E(1)); self.r = set(allr(2))
            else:
                self.w = set(E(0)); self.r = set(allr(1))
                if base in ('v_fmac_f32', 'v_pk_fmac_f16', 'v_dot2c_f32_bf16', 'v_writelane_b32') or self.dpp or 'op_sel' in mods and False:
                    self.r |= set(E(0))
                if base == 'v_cndmask_b32' and len(ops) == 3: self.r.add(('s', 'vcc'))
        elif op.startswith('buffer_') or op.startswith('global_'):
            self.kind = 'vmem'
            islds = re.search(r'\blds\b', mods) is not None or '_lds_' in op
            if islds:
                self.r = set(allr(0)) | {('s', 'm0')}; self.kind = 'vmem'; self.ldsdma = True
            elif 'store' in op or ('atomic' in op and 'sc0' not in mods):
                self.r = set(allr(0))
                if 'x3' in op or 'x4' in op:
                    self.wide_store_data = set(E(0) if op.startswith('buffer_') else E(1))
            else:
                self.w = set(E(0)); self.r = set(allr(1))
                if 'd16' in op or 'atomic' in op: self.r |= set(E(0))
        elif op.startswith('ds_'):
            self.kind = 'ds'
            if 'write' in op or op.startswith('ds_add') :
                self.r = set(allr(0))
            else:
                self.w = set(E(0)); self.r = set(allr(1))
        elif op.startswith('s_'):
            self.kind = 'salu'
            if op in ('s_nop', 's_waitcnt', 's_barrier', 's_endpgm', 's_branch', 's_setprio', 's_sleep') or op.startswith('s_cbranch'):
                pass
            elif op.startswith('s_cmp') or op.startswith('s_bitcmp'):
                self.r = set(allr(0))
            else:
                self.w = set(E(0)); self.r = set(allr(1))
                if 'saveexec' in op: self.w.add(('s', 'exec'))
        self.base = base
        self.dotAB = set(E(1) + E(2)) if base.startswith('v_dot') else set()
    def states(self):
        if self.kind == 'none': return 0
        if self.op == 's_nop': return int(self.text.split(';')[0].split()[1], 0) + 1
        return 1

def need(p, c):
    n = 0
    vw = {x for x in p.w if x[0] in 'va'}
    sw = {x for x in p.w if x[0] == 's'}
    if p.kind == 'valu':
        if c.kind == 'mfma' and vw & c.r: n = max(n, 2)
        if c.kind == 'valu':
            if c.dpp and vw & c.r: n = max(n, 2)
            if c.base.startswith('v_permlane') and vw & c.r: n = max(n, 2)
            if c.base in ('v_readlane_b32', 'v_readfirstlane_b32') and vw & c.r: n = max(n, 1)
            if p.base in TRANS and c.base not in TRANS and vw & c.r: n = max(n, 1)
            if p.base in TRANS and vw & c.r: n = max(n, 1)
            if sw & c.r:
                n = max(n, 4 if c.base in ('v_readlane_b32', 'v_writelane_b32', 'v_div_fmas_f32') else 2)
            if (('op_sel' in p.mods and not p.base.endswith('_f32')) or 'sdwa' in p.op or 'dst_sel' in p.mods) and vw & (c.r | c.w): n = max(n, 1)
            if p.base.startswith('v_dot') and vw & (c.r | c.w):
                same_c = c.base == p.base and not (vw & c.dotAB)
                if not same_c: n = max(n, 3)
        if c.kind in ('vmem',) and sw & c.r: n = max(n, 5)
        if c.kind == 'salu' and sw & c.r: n = max(n, 1)
        if p.base in TRANS and c.kind in ('vmem', 'ds') and vw & c.r: n = max(n, 1)
    if p.kind == 'mfma':
        big = {4: 8, 8: 12, 16: 20}[p.passes]; mid = {4: 6, 8: 10, 16: 18}[p.passes]; war = {4: 3, 8: 7, 16: 15}[p.passes]
        if c.kind == 'mfma':
            if p.w & c.srcAB: n = max(n, big)
            if p.w & c.srcC:
                if not (p.w == c.srcC and p.passes == c.passes): n = max(n, mid)
            if p.w & c.w and not (p.w & c.srcC): n = max(n, mid)
        elif c.kind in ('valu', 'vmem', 'ds'):
            if p.w & (c.r | c.w): n = max(n, big)
            if c.kind == 'valu' and p.srcC & c.w: n = max(n, war)
            if c.kind in ('vmem', 'ds') and p.srcC & c.w: n = max(n, war)
    if p.kind == 'vmem' and p.wide_store_data:
        if p.wide_store_data & c.w: n = max(n, 2 if c.kind == 'valu' else 1)
    if p.kind == 'salu' and ('s', 'm0') in p.w and c.kind == 'vmem' and ('s', 'm0') in c.r: n = max(n, 1)
    return n

import os
DROP = re.compile(os.environ['DROP']) if os.environ.get('DROP') else None
class Asm:
    def __init__(self):
        self.ins = []
        self.vmq = []
        self.lq = []
        self.bg = []
        self.bg_every = 0
        self._cnt = 0
        self._inbg = False
        self._scc = 0
    def __call__(self, text, tag=None):
        for line in text.split('\n'):
            line = line.strip()
            if not line: continue
            if DROP and DROP.search(line): line = 's_nop 0'
            ins = Ins(line)
            self.ins.append(ins)
            if ins.kind == 'vmem': self.vmq.append(tag)
            if ins.kind == 'ds': self.lq.append(tag)
            if not self._inbg and ins.kind != 'none':
                if ins.op.startswith('s_cmp') or ins.op.startswith('s_bitcmp'): self._scc = 1
                elif self._scc and (ins.op.startswith('s_cselect') or ins.op.startswith('s_cbranch_scc')): self._scc = 2
                elif self._scc == 2 and ins.kind != 'salu': self._scc = 0
            if ins.kind != 'none' and not self._inbg and self.bg_every and self.bg:
                self._cnt += 2 if ins.base in TRANS else 1
                if ins.kind == 'mfma': self._cnt += ins.passes // 2
                if self._cnt >= self.bg_every and ins.kind != 'salu' and not self._scc:
                    self._cnt = 0; self.bg_issue(1)
    def bg_issue(self, n):
        self._inbg = True
        for _ in range(n):
            if not self.bg: break
            lines, tag = self.bg.pop(0)
            for l in lines: self(l, tag)
        self._inbg = False
    def waitvm(self, tag, extra=''):
        if DROP and tag not in self.vmq:
            if extra: self(f's_waitcnt {extra}')
            return
        assert not any(t == tag for _, t in self.bg), tag
        idx = max(i for i, t in enumerate(self.vmq) if t == tag)
        n = len(self.vmq) - 1 - idx
        self._inbg, sv = True, self._inbg
        self(f's_waitcnt vmcnt({min(n, 63)}) {extra}'.strip())
        self._inbg = sv
    def waitl(self, tag):
        idx = max(i for i, t in enumerate(self.lq) if t == tag)
        n = len(self.lq) - 1 - idx
        if getattr(self, '_ldone', -1) >= idx: return
        self._inbg, sv = True, self._inbg
        self(f's_waitcnt lgkmcnt({min(n, 15)})')
        self._inbg = sv
        self._ldone = len(self.lq) - 1 - min(n, 15)
    def vm_empty(self):
        pass
    def finalize(self):
        out = []
        for c in self.ins:
            if c.kind != 'none':
                dist = 0; pad = 0
                for p in reversed(out):
                    if dist >= 20: break
                    if p.kind == 'none': continue
                    n = need(p, c)
                    if n > dist: pad = max(pad, n - dist)
                    dist += p.states()
                while pad > 0:
                    k = min(pad, 16)
                    out.append(Ins(f's_nop {k-1}')); pad -= k
            out.append(c)
        return '\n'.join(('' if i.label or i.directive else '    ') + i.text for i in out) + '\n'

def vr(a, n=1, p='v'):
    return f'{p}{a}' if n == 1 else f'{p}[{a}:{a+n-1}]'
def ar(a, n=1): return vr(a, n, 'a')
def sr(a, n=1): return vr(a, n, 's')
```

```python
import sys, os, struct
sys.path.insert(0, 'gen')
from asmlib import *

GRA = 0x20000
GRB = 0x30000
TKA, TKB, TKC = 0xC000, 0xD000, 0xE000
FL3 = 0x10000
FLH = 0x14000
BLK = 10368
VV = 0x100000
VP = 0x400000
WW = 0x700000
H2 = 0xA00000
X1 = 0xD00000
HH = 0x1000000
WD = 0x1600000
WS_USED = 0x1800000
HUGE = 0x40000000
MODA, T2L, T1L, MPART, MODB = 125440, 130560, 140800, 0, 153600
US, MS, BS = 1952, 31344, 62688
LB, L3, WST = T1L, MODA, T2L
A_X, A_WR, A_WI, A_WG, A_WU, A_WD, A_C, A_WM, A_OUT, A_DBG, A_WS = 0, 8, 16, 32, 40, 48, 56, 64, 72, 80, 88
M32 = 'v_mfma_f32_32x32x16_bf16'
M16 = 'v_mfma_f32_16x16x32_bf16'
def fl(x): return '0x%08x' % struct.unpack('<I', struct.pack('<f', x))[0]
INSTR = os.environ.get('INSTR', '0') == '1'
STAMP = 0x2000000
STSEL = os.environ.get('STSEL', 'main').split(',')
POLL_MAX = 1 << 14

class St:
    def __init__(self, a, kid):
        self.a = a; self.kid = kid; self.n = 0
        if INSTR:
            a('s_memrealtime s[64:65]')
            a('s_mov_b32 s95, 0')
            self.stamp('all')
    def stamp(self, grp='main'):
        if not INSTR: return
        if grp not in STSEL and grp != 'all': return
        assert self.n < 13
        self.a(f's_memtime s[{68+2*self.n}:{69+2*self.n}]'); self.n += 1
    def end(self):
        if not INSTR: return
        a = self.a
        a('s_waitcnt vmcnt(0)')
        self.stamp('all')
        a('s_memrealtime s[66:67]')
        a('s_mov_b64 exec, -1')
        a(f's_add_u32 s96, s4, {STAMP + self.kid * 0x100000}')
        a('s_addc_u32 s97, s5, 0')
        a('s_mov_b32 s98, 0x100000')
        a('s_mov_b32 s99, 0x20000')
        a('s_lshl_b32 s100, s2, 9')
        a('s_lshl_b32 s101, s3, 6')
        a('s_add_u32 s100, s100, s101')
        a('s_waitcnt lgkmcnt(0)')
        a('v_mov_b32 v1, 0')
        a('v_mov_b32 v2, s95')
        a('buffer_store_dword v2, v1, s[96:99], s100 offen offset:60')
        for i, r in enumerate([64, 66] + [68 + 2 * i for i in range(self.n)]):
            a(f'v_mov_b32 v2, s{r}')
            a(f'buffer_store_dword v2, v1, s[96:99], s100 offen offset:{4*i}')

def srd(a, d, lo, size, off=0):
    if off:
        a(f's_add_u32 s{d}, s{lo}, {off}')
        a(f's_addc_u32 s{d+1}, s{lo+1}, 0')
    else:
        a(f's_mov_b32 s{d}, s{lo}')
        a(f's_mov_b32 s{d+1}, s{lo+1}')
    a(f's_mov_b32 s{d+2}, {size}')
    a(f's_mov_b32 s{d+3}, 0x20000')

def pkb(r):
    return vr(r & ~1, 2), r & 1

def ln_stats(a, XA, XB, T, st, fill):
    for i in range(5):
        c = lambda r: '0' if i == 0 else f'v{r}'
        a(f'v_dot2_f32_bf16 v{T}, v{XA+i}, s33, {c(T)}')
        a(f'v_dot2_f32_bf16 v{T+1}, v{XB+i}, s33, {c(T+1)}')
        a(f'v_dot2_f32_bf16 v{T+2}, v{XA+i}, v{XA+i}, {c(T+2)}')
        a(f'v_dot2_f32_bf16 v{T+3}, v{XB+i}, v{XB+i}, {c(T+3)}')
    for m in ('quad_perm:[1,0,3,2] row_mask:0xf bank_mask:0xf', 'quad_perm:[2,3,0,1] row_mask:0xf bank_mask:0xf',
              'row_ror:4 row_mask:0xf bank_mask:0xf', 'row_ror:8 row_mask:0xf bank_mask:0xf',
              'row_bcast:15 row_mask:0xa bank_mask:0xf', 'row_bcast:31 row_mask:0xc bank_mask:0xf'):
        for r in range(4):
            a(f'v_add_f32_dpp v{T+r}, v{T+r}, v{T+r} {m}')
    for i in range(4):
        a(f'v_readlane_b32 s{st+i}, v{T+i}, 63')
    a(f'v_mov_b32 v{T+4}, {fl(1/640)}')
    a(f'v_mov_b32 v{T+5}, {fl(1e-5)}')
    fill = list(fill)
    def F(n=1):
        for _ in range(n):
            if fill: a(fill.pop(0))
    a(f'v_pk_mul_f32 {vr(T+6,2)}, {vr(T+4,2)}, {sr(st,2)} op_sel_hi:[0,1]')
    a(f'v_pk_fma_f32 {vr(T,2)}, {vr(T+4,2)}, {sr(st+2,2)}, {vr(T+4,2)} op_sel:[0,0,1] op_sel_hi:[0,1,1]')
    a(f'v_pk_fma_f32 {vr(T,2)}, {vr(T+6,2)}, {vr(T+6,2)}, {vr(T,2)} neg_lo:[1,0,0] neg_hi:[1,0,0]')
    a(f'v_max_f32 v{T}, v{T+5}, v{T}')
    a(f'v_max_f32 v{T+1}, v{T+5}, v{T+1}')
    a(f'v_rsq_f32 v{T}, v{T}')
    a(f'v_rsq_f32 v{T+1}, v{T+1}')
    F(len(fill))
    a(f'v_pk_mul_f32 {vr(T+2,2)}, {vr(T+6,2)}, {vr(T,2)} neg_lo:[1,0] neg_hi:[1,0]')

def load40(a, dst, voff, soff, off, tag):
    a(f'buffer_load_dwordx4 {vr(dst,4)}, v{voff}, s[16:19], {soff} offen offset:{off}', tag)
    a(f'buffer_load_dwordx4 {vr(dst+4,4)}, v{voff}, s[16:19], {soff} offen offset:{off+16}', tag)
    a(f'buffer_load_dwordx2 {vr(dst+8,2)}, v{voff}, s[16:19], {soff} offen offset:{off+32}', tag)

def cs_pair(a, th, t0, t1, dre, dim, inv=False):
    a(f'v_cos_f32 v{t0}, v{th}')
    a(f'v_sin_f32 v{t1}, v{th}')
    def fin():
        if inv:
            a(f'v_cvt_pk_bf16_f32 v{dre}, v{t0}, -v{t1}')
            a(f'v_cvt_pk_bf16_f32 v{dim}, v{t1}, v{t0}')
        else:
            a(f'v_cvt_pk_bf16_f32 v{dre}, v{t0}, v{t1}')
            a(f'v_cvt_pk_bf16_f32 v{dim}, -v{t1}, v{t0}')
    return fin

def slot20(a, dst, t):
    a(f'v_and_b32 v{dst}, 3, v3')
    a(f'v_lshrrev_b32 v{t}, 3, v3')
    a(f'v_lshl_add_u32 v{dst}, v{t}, 2, v{dst}')
    a(f'v_min_u32 v{dst}, 9, v{dst}')
    a(f'v_bfe_u32 v{t}, v3, 2, 1')
    a(f'v_mad_u32_u24 v{dst}, v{t}, 10, v{dst}')

def poll(a, name, loads, regs, t, zero_is_bad=False):
    sv, a.bg_every = a.bg_every, 0
    a(f's_mov_b32 s34, {POLL_MAX}')
    a(f'L{name}:')
    for l in loads: a(l, name)
    a('s_waitcnt vmcnt(0)')
    op = 'min' if zero_is_bad else 'max'
    rs = list(regs)
    a(f'v_{op}3_u32 v{t}, v{rs[0]}, v{rs[1]}, v{rs[2]}'); rs = rs[3:]
    while rs:
        if len(rs) >= 2: a(f'v_{op}3_u32 v{t}, v{t}, v{rs[0]}, v{rs[1]}'); rs = rs[2:]
        else: a(f'v_{op}_u32 v{t}, v{t}, v{rs[0]}'); rs = rs[1:]
    a(f'v_cmp_eq_u32 vcc, {0 if zero_is_bad else -1}, v{t}')
    a('s_sub_u32 s34, s34, 1')
    a(f's_cbranch_scc1 L{name}_x')
    a('s_cmp_lg_u64 vcc, 0')
    a(f's_cbranch_scc1 L{name}')
    a(f'L{name}_x:')
    a.bg_every = sv

JIT = os.environ.get('JIT', '0') == '1'
_jn = [0]
def jitter(a):
    if not JIT: return
    _jn[0] += 1
    sv, a.bg_every = a.bg_every, 0
    a('s_memtime s[64:65]')
    a('s_waitcnt lgkmcnt(0)')
    a('s_mul_i32 s64, s64, 0x9e3779b1')
    a('s_lshr_b32 s64, s64, 25')
    a('s_cmp_lt_u32 s64, 96')
    a(f's_cbranch_scc1 Lj{_jn[0]}x')
    a('s_sub_u32 s64, s64, 95')
    a(f'Lj{_jn[0]}:')
    a('s_sleep 3')
    a('s_sub_u32 s64, s64, 1')
    a('s_cmp_lg_u32 s64, 0')
    a(f's_cbranch_scc1 Lj{_jn[0]}')
    a(f'Lj{_jn[0]}x:')
    a.bg_every = sv

TOKOP = os.environ.get('TOKOP', 'buffer_atomic_swap_x2')
B1T = 8

def poll2(a, name, tag, loads, regs, t):
    sv, a.bg_every = a.bg_every, 0
    a(f's_mov_b32 s34, {POLL_MAX}')
    a.waitvm(tag)
    a(f'L{name}:')
    rs = list(regs)
    a(f'v_max3_u32 v{t}, v{rs[0]}, v{rs[1]}, v{rs[2]}'); rs = rs[3:]
    while rs:
        if len(rs) >= 2: a(f'v_max3_u32 v{t}, v{t}, v{rs[0]}, v{rs[1]}'); rs = rs[2:]
        else: a(f'v_max_u32 v{t}, v{t}, v{rs[0]}'); rs = rs[1:]
    a(f'v_cmp_eq_u32 vcc, -1, v{t}')
    a('s_cmp_eq_u64 vcc, 0')
    a(f's_cbranch_scc1 L{name}_x')
    for l in loads: a(l); a.vmq.pop()
    a('s_waitcnt vmcnt(0)')
    a('s_sub_u32 s34, s34, 1')
    a(f's_cbranch_scc0 L{name}')
    a(f'L{name}_x:')
    a.bg_every = sv

import contextlib
@contextlib.contextmanager
def nobg(a):
    sv, a.bg_every = a.bg_every, 0
    yield
    a.bg_every = sv

def tagchk(a, regs, t):
    rs = list(regs)
    for k, r in enumerate(rs): a(f'v_xor_b32 v{r}, s{8+(k&1)}, v{r}')
    a(f'v_or_b32 v{t}, v{rs[0]}, v{rs[1]}'); rs = rs[2:]
    while rs: a(f'v_or3_b32 v{t}, v{t}, v{rs[0]}, v{rs[1]}'); rs = rs[2:]
    a(f'v_cmp_ne_u32 vcc, 0, v{t}')

def tokpoll(a, name, base, R, first=None):
    ld = [f'buffer_load_dwordx4 {vr(R+4*i,4)}, v2, s[16:19], s32 offen offset:{1024*i} sc1' for i in range(2)]
    with nobg(a):
        a(f's_mov_b32 s34, {POLL_MAX}')
        a(f's_mov_b32 s32, {base}')
        if first: a.waitvm(first)
        else: a(f's_branch L{name}_l')
        a(f'L{name}:')
        tagchk(a, range(R, R + 8), R)
        a('s_cmp_eq_u64 vcc, 0')
        a(f's_cbranch_scc1 L{name}_x')
        a(f'L{name}_l:')
        for l in ld: a(l); a.vmq.pop()
        a('s_waitcnt vmcnt(0)')
        a('s_sub_u32 s34, s34, 1')
        a(f's_cbranch_scc0 L{name}')
        a(f'L{name}_x:')
def tokload(a, base, R, tag):
    a(f's_mov_b32 s32, {base}')
    for i in range(2): a(f'buffer_load_dwordx4 {vr(R+4*i,4)}, v2, s[16:19], s32 offen offset:{1024*i} sc1', tag)

def mega():
    a = Asm()
    a('s_cmp_ge_u32 s2, 256')
    a('s_cbranch_scc1 Lm_end')
    st = St(a, 1); jitter(a)
    a(f's_load_dwordx2 s[56:57], s[0:1], {A_WM}')
    a(f's_load_dwordx2 s[20:21], s[0:1], {A_C}')
    a(f's_load_dwordx2 s[24:25], s[0:1], {A_DBG}')
    a(f's_load_dwordx2 s[4:5], s[0:1], {A_WS}')
    a(f's_load_dwordx2 s[40:41], s[0:1], {A_OUT}')
    a(f's_load_dwordx2 s[42:43], s[0:1], {A_X}')
    a(f's_load_dwordx2 s[44:45], s[0:1], {A_WR}')
    a(f's_load_dwordx2 s[48:49], s[0:1], {A_WI}')
    a(f's_load_dwordx4 s[52:55], s[0:1], {A_WG}')
    a(f's_load_dwordx2 s[6:7], s[0:1], {A_WD}')
    a('s_memrealtime s[8:9]')
    a('s_getpc_b64 s[28:29]')
    a('Lpc0:')
    a('s_lshr_b32 s61, s2, 3')
    a('s_cmp_eq_u32 s61, 1')
    a('s_cselect_b32 s30, Lcode_end-Lpc0, 0')
    a('s_mov_b32 s31, 0x20000')
    a('v_lshlrev_b32 v188, 7, v0')
    a('buffer_load_dword v255, v188, s[28:31], 0 offen')
    a('v_and_b32 v1, 63, v0')
    a('v_lshrrev_b32 v2, 6, v0')
    a('v_readfirstlane_b32 s3, v2')
    a('v_lshlrev_b32 v2, 4, v1')
    a('v_and_b32 v3, 31, v1')
    a('v_lshrrev_b32 v4, 5, v1')
    a('v_lshl_add_u32 v5, v3, 1, v4')
    a('s_and_b32 s62, s2, 7')
    a('s_mul_i32 s60, s62, 10')
    a('s_add_u32 s60, s60, s61')
    a('s_sub_u32 s60, s60, 2')
    a('s_mul_i32 s35, s62, 20')
    a('s_add_u32 s35, s35, s61')
    a('s_add_u32 s35, s35, 68')
    a('s_cmp_lt_u32 s61, 12')
    a('s_cselect_b32 s60, s60, s35')
    a('s_cmp_lt_u32 s61, 2')
    a('s_cselect_b32 s60, 240, s60')
    a(f's_cselect_b32 s58, 0, {640*7680}')
    a('s_mov_b32 s59, 0x20000')
    a('s_movk_i32 s22, 1280')
    a('s_mov_b32 s23, 0x20000')
    a('s_mov_b32 s27, 0x20000')
    a('v_lshrrev_b32 v240, 3, v0')
    a('v_and_b32 v190, 7, v0')
    a('v_mul_u32_u24 v251, 7680, v240')
    a('v_lshl_add_u32 v251, v190, 4, v251')
    a('v_lshlrev_b32 v240, 1, v240')
    a('s_and_b32 s34, s60, 3')
    a(f's_mul_i32 s35, s34, {160*7680}')
    a('s_lshr_b32 s32, s60, 2')
    a('s_lshl_b32 s32, s32, 7')
    a('s_add_u32 s35, s35, s32')
    a('s_mul_i32 s39, s34, 320')
    a('v_mov_b32 v188, 0')
    a('s_or_b32 s32, s2, s3')
    a('s_cmp_eq_u32 s32, 0')
    a('s_cselect_b32 s26, 256, 0')
    a('s_mov_b32 s13, 0xffff0000')
    a('s_mov_b32 s33, 0x3f803f80')
    a('s_lshl_b32 s14, s62, 5')
    a('s_add_u32 s14, s14, s61')
    a('s_mul_i32 s15, s62, 27')
    a('s_min_u32 s32, s61, 26')
    a('s_add_u32 s15, s15, s32')
    a('s_cmp_lt_u32 s61, 27')
    a(f's_cselect_b32 s63, 0, {HUGE}')
    a('s_cmp_lt_u32 s15, 214')
    a(f's_cselect_b32 s63, s63, {HUGE}')
    a('s_min_u32 s15, s15, 213')
    a('s_lshr_b32 s10, s62, 2'); a('s_lshl_b32 s10, s10, 3'); a('s_lshr_b32 s32, s61, 2'); a('s_add_u32 s10, s10, s32')
    a('s_and_b32 s11, s62, 3'); a('s_lshl_b32 s11, s11, 2'); a('s_and_b32 s32, s61, 3'); a('s_add_u32 s11, s11, s32')
    a('s_lshl_b32 s12, s10, 4')
    a('s_add_u32 s12, s12, s11')
    XA, XB, CA, SA, A2, TW, A3, F, FR, AR, AI, AX, PK, T, AD, WRAW, SC = 40, 46, 52, 62, 72, 96, 116, 120, 140, 160, 176, 192, 208, 220, 232, 240, 244
    a(f'v_mov_b32 v71, {HUGE}')
    a(f'v_lshlrev_b32 v{AD+6}, 4, v5')
    a('s_lshl_b32 s32, s3, 5')
    a(f'v_add_u32 v{T+11}, s32, v3')
    a(f'v_cmp_ge_u32 vcc, 64, v{T+11}')
    a(f'v_cndmask_b32 v{AD+7}, v71, v{AD+6}, vcc')
    for i in range(4): a(f'v_mov_b32 v{156+i}, -1')
    a(f's_mul_i32 s38, s12, {BLK}')
    a('s_lshl_b32 s32, s3, 10')
    a('s_add_u32 s38, s38, s32')
    a(f's_add_u32 s38, s38, {VV}')
    a(f'v_cvt_f32_u32 v{T}, v3')
    a(f'v_mul_f32 v{T}, {fl(1/32)}, v{T}')
    a(f'v_cvt_f32_u32 v{T+1}, v4')
    a(f'v_mul_f32 v{T+2}, 4.0, v{T}')
    a(f'v_mul_f32 v{T+3}, v{T+1}, v{T+2}')
    def b1t(j):
        for i in range(4):
            fin = cs_pair(a, T+3, T+4, T+5, B1T+4*j+i, B1T+16+4*j+i)
            a(f'v_add_f32 v{T+3}, v{T+3}, v{T}')
            if i == 3: a(f'v_add_f32 v{T+3}, v{T+3}, v{T+2}')
            fin()
    a('s_waitcnt lgkmcnt(0)')
    st.stamp('p0')
    a('s_bitset1_b32 s9, 31')
    a('v_mov_b32 v186, s8')
    a('v_mov_b32 v187, s9')
    a('s_mov_b64 exec, 1')
    a('buffer_store_dwordx2 v[186:187], v188, s[24:27], 0 offen sc1')
    a('s_mov_b64 exec, -1')
    for i in range(5):
        a(f'buffer_load_ushort v{SC+i}, v240, s[20:23], s39 offen offset:{i*64}', 'c')
    for i in range(5):
        a(f'buffer_load_dwordx4 {vr(160+4*i,4)}, v251, s[56:59], s35 offen', f'w{i}')
        if i < 4: a(f's_add_u32 s35, s35, {32*7680}')
    srd(a, 16, 4, WS_USED)
    a('s_mov_b32 s20, s42')
    a('s_mov_b32 s21, s43')
    a(f's_mov_b32 s22, {2048*1280}')
    a('s_movk_i32 s26, 256')
    a(f's_mov_b32 s46, {2048*642}')
    a('s_mov_b32 s47, 0x20000')
    a(f's_mov_b32 s50, {2048*642}')
    a('s_mov_b32 s51, 0x20000')
    a('s_cmp_ge_u32 s3, 2')
    a('s_cselect_b32 s28, s54, s52')
    a('s_cselect_b32 s29, s55, s53')
    a(f's_mov_b32 s30, {640*3072}')
    a('s_lshl_b32 s35, s3, 8')
    a('s_add_u32 s35, s35, s12')
    a('s_mul_i32 s36, s35, 1280')
    a(f's_add_u32 s37, s36, {1024*1280}')
    a('v_mul_u32_u24 v6, 20, v5')
    a('v_lshlrev_b32 v7, 1, v6')
    a('s_lshr_b32 s34, s14, 5')
    a('s_bfe_u32 s42, s14, 0x20003')
    a('s_lshl_b32 s42, s42, 9')
    a('s_add_u32 s42, s42, s34')
    a('s_bfe_u32 s32, s14, 0x10002')
    a('s_lshl_b32 s32, s32, 6')
    a('s_add_u32 s42, s42, s32')
    a('s_lshl_b32 s32, s3, 4')
    a('s_add_u32 s42, s42, s32')
    a('s_mul_i32 s42, s42, 642')
    a('s_andn2_b32 s42, s42, 3')
    a('s_and_b32 s32, s14, 3')
    a('s_mul_i32 s43, s32, 160')
    a('s_add_u32 s52, s42, s43')
    a('s_and_b32 s53, s34, 1')
    a('v_lshlrev_b32 v191, 3, v1')
    a(f'v_add_u32 v66, {5136-168}, v191')
    a('v_cmp_gt_u32 vcc, 21, v1')
    a('v_cndmask_b32 v191, v66, v191, vcc')
    a('v_cmp_gt_u32 vcc, 42, v1')
    a('v_cndmask_b32 v191, v71, v191, vcc')
    def xw_loads():
        a(f'buffer_load_dwordx4 {vr(XA,4)}, v6, s[20:23], s36 offen', 'x')
        a(f'buffer_load_dword v{XA+4}, v6, s[20:23], s36 offen offset:16', 'x')
        a(f'buffer_load_dwordx4 {vr(XB,4)}, v6, s[20:23], s37 offen', 'x')
        a(f'buffer_load_dword v{XB+4}, v6, s[20:23], s37 offen offset:16', 'x')
        for i in range(3):
            a(f's_add_u32 s35, s38, {4096*i}')
            a(f'buffer_store_dwordx4 v[156:159], v{AD+6+(i==2)}, s[16:19], s35 offen sc1', 'fillv')
        for r in range(4):
            a(f'buffer_load_dwordx2 {vr(192+4*r,2)}, v191, s[44:47], s52 offen', 'W')
            a(f'buffer_load_dwordx2 {vr(194+4*r,2)}, v191, s[48:51], s52 offen', 'W')
            if r < 3: a('s_add_u32 s52, s52, 82176')
    def silu():
        t = 57
        for i in range(5): a(f'v_lshlrev_b32 v{SC+i}, 16, v{SC+i}')
        for i in range(5): a(f'v_mul_f32 v{t+i}, 0xbfb8aa3b, v{SC+i}')
        for i in range(5): a(f'v_exp_f32 v{t+i}, v{t+i}')
        for i in range(5): a(f'v_add_f32 v{t+i}, 1.0, v{t+i}')
        for i in range(5): a(f'v_rcp_f32 v{t+i}, v{t+i}')
        for i in range(5): a(f'v_mul_f32 v{SC+i}, v{SC+i}, v{t+i}')
        for i in range(5): a(f'v_cvt_pk_bf16_f32 v{SC+i}, v{SC+i}, v{SC+i}')
        for i in range(5): a(f'v_and_b32 v{SC+i}, s13, v{SC+i}')
    def getnonce(sfx, loaded):
        if not loaded: a('buffer_load_dwordx2 v[64:65], v188, s[24:27], 0 offen sc1', 'nonce' + sfx)
        a.waitvm('nonce' + sfx)
        a('v_readfirstlane_b32 s8, v64')
        a('v_readfirstlane_b32 s9, v65')
        a(f's_mov_b32 s32, {POLL_MAX}')
        a(f'Lnp{sfx}:')
        a('s_cmp_lg_u32 s9, 0')
        a(f's_cbranch_scc1 Lnp{sfx}_x')
        a('buffer_load_dwordx2 v[64:65], v188, s[24:27], 0 offen sc1')
        a.vmq.pop()
        a('s_waitcnt vmcnt(0)')
        a('v_readfirstlane_b32 s8, v64')
        a('v_readfirstlane_b32 s9, v65')
        a('s_sub_u32 s32, s32, 1')
        a(f's_cbranch_scc0 Lnp{sfx}')
        a(f'Lnp{sfx}_x:')
    W0, AC, t = 160, 180, 52
    b1t(0)
    a(f'v_lshrrev_b32 v{t+4}, 4, v0')
    a(f'v_lshlrev_b32 v{t+4}, 8, v{t+4}')
    a(f'v_lshl_add_u32 v67, v190, 5, v{t+4}')
    if XW_EARLY == 1: xw_loads()
    a.waitvm('c')
    silu()
    st.stamp('p0')
    for i in range(5):
        a.waitvm(f'w{i}')
        if i == NONCE_AT: a('buffer_load_dwordx2 v[64:65], v188, s[24:27], 0 offen sc1', 'nonceA')
        cp, cs_ = pkb(SC+i)
        for q in range(4):
            a(f'v_lshlrev_b32 v{t+2*(q&1)}, 16, v{W0+4*i+q}')
            a(f'v_and_b32 v{t+1+2*(q&1)}, s13, v{W0+4*i+q}')
            if i == 0: a(f'v_pk_mul_f32 {vr(AC+2*q,2)}, {vr(t+2*(q&1),2)}, {cp} op_sel:[0,{cs_}] op_sel_hi:[1,{cs_}]')
            else: a(f'v_pk_fma_f32 {vr(AC+2*q,2)}, {vr(t+2*(q&1),2)}, {cp}, {vr(AC+2*q,2)} op_sel:[0,{cs_},0] op_sel_hi:[1,{cs_},1]')
    st.stamp('p0')
    if XW_EARLY == 0: xw_loads()
    for q in range(8):
        a(f'v_add_f32_dpp v{AC+q}, v{AC+q}, v{AC+q} row_ror:8 row_mask:0xf bank_mask:0xf')
    a('s_mov_b32 s42, 0xff00ff')
    a('s_mov_b32 s43, 0xff00ff')
    a('s_mov_b64 exec, s[42:43]')
    a(f'ds_write_b128 v67, {vr(AC,4)}')
    a(f'ds_write_b128 v67, {vr(AC+4,4)} offset:16')
    a('s_mov_b64 exec, -1')
    getnonce('A', True)
    a(f'v_lshlrev_b32 v{t+1}, 2, v1')
    a('s_waitcnt lgkmcnt(0)')
    a('s_barrier')
    for i in range(16): a(f'ds_read_b32 v{W0+i}, v{t+1} offset:{i*256}')
    a('s_and_b32 s34, s60, 3')
    a('s_mul_i32 s34, s34, 10240')
    a('s_lshr_b32 s32, s60, 2')
    a('s_lshl_b32 s35, s32, 9')
    a('s_add_u32 s35, s35, s34')
    a(f's_add_u32 s35, s35, {GRA}')
    a('s_lshl_b32 s39, s32, 8')
    a('s_add_u32 s39, s39, s34')
    a(f's_add_u32 s39, s39, {GRB - 20*256}')
    a('s_cmp_lt_u32 s60, 80')
    a(f's_cselect_b32 s42, 0, {HUGE}')
    a(f's_cselect_b32 s43, {HUGE}, 0')
    a('s_cmp_lt_u32 s60, 240')
    a(f's_cselect_b32 s43, s43, {HUGE}')
    a('s_cmp_eq_u32 s3, 0')
    a(f's_cselect_b32 s42, s42, {HUGE}')
    a(f's_cselect_b32 s43, s43, {HUGE}')
    a(f'v_lshl_add_u32 v{t}, v1, 3, s42')
    a(f'v_add_u32 v{t+1}, s43, v{t+1}')
    a(f'v_mov_b32 v{W0+17}, s8')
    a(f'v_mov_b32 v{W0+19}, s9')
    a('s_mov_b32 s42, 0x55555555')
    a('s_mov_b32 s43, 0x55555555')
    a('s_waitcnt lgkmcnt(0)')
    for stp in (8, 4, 2):
        for i in range(0, stp, 2): a(f'v_pk_add_f32 {vr(W0+i,2)}, {vr(W0+i,2)}, {vr(W0+i+stp,2)}')
    a(f'v_add_f32 v{W0+16}, v{W0}, v{W0+1}')
    a(f'v_mov_b32_dpp v{W0+18}, v{W0+16} quad_perm:[1,1,3,3] row_mask:0xf bank_mask:0xf')
    a('s_mov_b64 exec, s[42:43]')
    a(f'buffer_store_dwordx4 {vr(W0+16,4)}, v{t}, s[16:19], s35 offen sc1')
    a('s_mov_b64 exec, -1')
    a(f'buffer_store_dword v{W0+16}, v{t+1}, s[16:19], s39 offen sc1')
    st.stamp(); st.stamp('p0'); jitter(a)
    if XW_EARLY == 2: xw_loads()
    def pf1(R, defer=False, V=249):
        a(f'v_mul_u32_u24 v{V}, 10923, v1')
        a(f'v_lshrrev_b32 v{V}, 16, v{V}')
        a(f'v_mul_u32_u24 v{V}, {3072-768}, v{V}')
        a(f'v_lshl_add_u32 v{V}, v1, 7, v{V}')
        a('s_and_b32 s32, s3, 1')
        a(f's_lshl_b32 s32, s32, 30')
        a(f'v_add_u32 v{V}, s32, v{V}')
        a(f's_mul_i32 s35, s61, {10*3072}')
        a('s_andn2_b32 s32, s11, 3')
        a('s_mul_i32 s32, s32, 192')
        a('s_add_u32 s35, s35, s32')
        if R: a(f's_add_u32 s35, s35, {320*3072}')
        if defer:
            a(f'v_add_u32 v{V}, s35, v{V}')
            a.bg.append(([f'buffer_load_dword v255, v{V}, s[28:31], 0 offen'], None))
        else: a(f'buffer_load_dword v255, v{V}, s[28:31], s35 offen')
    if PF1 == 2: pf1(0)
    b1t(1)
    a(f'v_and_b32 v{T+4}, 1, v3')
    a(f'v_mul_u32_u24 v{T+4}, 0x8000, v{T+4}')
    a(f'v_lshl_or_b32 v{T+4}, v{T+4}, 16, v{T+4}')
    for k in range(8):
        a(f'v_xor_b32 v{B1T+8+k}, v{T+4}, v{B1T+k}')
        a(f'v_xor_b32 v{B1T+24+k}, v{T+4}, v{B1T+16+k}')
    a(f'v_mul_f32 v{T}, {fl(1/20)}, v{T}')
    a(f'v_mul_f32 v{T+1}, {fl(10.0)}, v{T+1}')
    a(f'v_mul_f32 v{T+3}, v{T+1}, v{T}')
    for r in range(10):
        a(f'v_cos_f32 v{TW+r}, v{T+3}')
        a(f'v_sin_f32 v{TW+10+r}, v{T+3}')
        if r < 9: a(f'v_add_f32 v{T+3}, v{T+3}, v{T}')
    a(f'v_mul_u32_u24 v{AD}, 1440, v4')
    a(f'v_lshl_add_u32 v{AD}, v3, 2, v{AD}')
    a('s_mul_i32 s35, s3, 2880')
    a(f's_add_u32 s35, s35, {T1L}')
    a(f'v_add_u32 v{AD}, s35, v{AD}')
    slot20(a, T+6, T+7)
    a(f'v_mul_u32_u24 v{AD+1}, 144, v{T+6}')
    a(f'v_lshl_add_u32 v{AD+1}, v4, 4, v{AD+1}')
    a(f'v_add_u32 v{AD+1}, s35, v{AD+1}')
    a(f'v_cvt_f32_u32 v{T}, v{T+6}')
    a(f'v_mul_f32 v{T}, {fl(1/20)}, v{T}')
    a(f'v_mul_f32 v{T+3}, v{T+1}, v{T}')
    for r in range(10):
        fin = cs_pair(a, T+3, T+4, T+5, A2+r, A2+12+r)
        a(f'v_add_f32 v{T+3}, v{T+3}, v{T}')
        fin()
    for r in (A2+10, A2+11, A2+22, A2+23): a(f'v_mov_b32 v{r}, 0')
    fill = []
    for i in range(5):
        for X, o in ((XA, 0), (XB, 1)):
            fill.append(f'v_lshlrev_b32 v{F+4*i+o}, 16, v{X+i}')
            fill.append(f'v_and_b32 v{F+4*i+2+o}, s13, v{X+i}')
    st.stamp('p0')
    a.waitvm('x')
    st.stamp('p0')
    ln_stats(a, XA, XB, PK, 44, fill)
    for i in range(10):
        a(f'v_pk_fma_f32 {vr(F+2*i,2)}, {vr(F+2*i,2)}, {vr(PK,2)}, {vr(PK+2,2)}')
    a('v_mul_u32_u24 v56, 576, v1')
    a(f'v_add_u32 v57, {16 - 21*576}, v56')
    a('v_cmp_gt_u32 vcc, 21, v1')
    a('v_cndmask_b32 v56, v57, v56, vcc')
    a('s_lshl_b32 s32, s3, 5')
    a(f's_add_u32 s32, s32, {WST}')
    a('v_add_u32 v56, s32, v56')
    a('v_lshrrev_b32 v191, 3, v0')
    a('v_add_u32 v57, s53, v191')
    a('v_mul_u32_u24 v57, 144, v57')
    a('v_lshl_add_u32 v57, v190, 4, v57')
    a(f'v_add_u32 v57, {WST}, v57')
    a('v_lshlrev_b32 v61, 13, v191')
    a('v_lshl_add_u32 v61, v190, 4, v61')
    a('s_and_b32 s32, s14, 3')
    a('s_cmp_eq_u32 s32, 3')
    a('s_cselect_b32 s35, 17, 16')
    a('v_cmp_gt_u32 vcc, s35, v191')
    a('v_cndmask_b32 v62, v71, v61, vcc')
    a(f's_mul_i32 s52, s32, {80*8192}')
    a('s_lshr_b32 s35, s14, 2')
    a('s_lshl_b32 s35, s35, 7')
    a('s_add_u32 s52, s52, s35')
    a(f's_add_u32 s52, s52, {WW}')
    a(f's_add_u32 s53, s52, {32*8192}')
    a(f's_add_u32 s54, s52, {64*8192}')
    a('s_mov_b32 s44, 0x05040100')
    a('s_mov_b32 s45, 0x07060302')
    a('v_lshlrev_b32 v63, 4, v0')
    a('v_add_u32 v59, 4096, v63')
    a('v_lshrrev_b32 v58, 1, v63')
    a('v_add_u32 v60, 8192, v58')
    for k in range(4): a(f's_mov_b32 s{56+k}, {GRA + 10240*k}')
    a('v_mov_b32 v68, s8')
    a('v_mov_b32 v69, s9')
    a('v_and_b32 v70, 1, v0')
    a('v_cmp_eq_u32 vcc, 0, v70')
    a('v_cndmask_b32 v68, v69, v68, vcc')
    a('v_lshrrev_b32 v69, 1, v58')
    a(f'v_add_u32 v58, {MODA}, v58')
    a(f'v_add_u32 v69, {MODA+4096}, v69')
    a(f'v_add_u32 v243, {MODA}, v7')
    a('s_cmp_eq_u32 s3, 0')
    a('s_cselect_b32 s49, 0, 1.0')
    a('s_mov_b32 s24, s40')
    a('s_mov_b32 s25, s41')
    a(f's_mov_b32 s26, {2048*1280}')
    a.waitvm('W'); jitter(a)
    st.stamp('p0')
    a('v_cmp_gt_u32 vcc, 42, v1')
    a('s_and_saveexec_b64 s[42:43], vcc')
    for i in range(4):
        for r in range(4):
            a(f'v_perm_b32 v{140+4*i+r}, v{194+4*r+(i>>1)}, v{192+4*r+(i>>1)}, s{44+(i&1)}')
        a(f'ds_write_b128 v56, {vr(140+4*i,4)} offset:{144*i}')
    a('s_mov_b64 exec, s[42:43]')
    gl = []
    for k in range(4):
        gl += [f'buffer_load_dwordx4 {vr(160+4*k,4)}, v63, s[16:19], s{56+k} offen sc1', f'buffer_load_dwordx4 {vr(176+4*k,4)}, v59, s[16:19], s{56+k} offen sc1',
               f'buffer_load_dwordx2 {vr(192+2*k,2)}, v60, s[16:19], s{56+k} offen sc1']
    a('v_mov_b32 v240, s8')
    a('v_mov_b32 v241, s9')
    a('s_lshl_b32 s35, s2, 3')
    a('s_cmp_eq_u32 s3, 0')
    a(f's_cselect_b32 s35, s35, {HUGE}')
    a('v_mov_b32 v242, s35')
    def token(base, r=240):
        with nobg(a):
            a(f's_mov_b32 s35, {base}')
            a('s_mov_b64 exec, 1')
            a(f'{TOKOP} {vr(r,2)}, v{r+2}, s[16:19], s35 offen sc1')
            a('s_mov_b64 exec, -1')
    a(f'v_mul_u32_u24 v{AD+2}, 5120, v4')
    a(f'v_lshl_add_u32 v{AD+2}, v3, 4, v{AD+2}')
    a('s_lshl_b32 s35, s3, 2')
    a(f's_add_u32 s35, s35, {T2L}')
    a(f'v_add_u32 v{AD+2}, s35, v{AD+2}')
    a(f'v_mov_b32 v{T+8}, {fl(0.25)}')
    a(f'v_and_b32 v{T}, 4, v3'); a(f'v_bfe_u32 v{T+1}, v3, 3, 1'); a(f'v_lshl_add_u32 v{T}, v{T+1}, 1, v{T}')
    a(f'v_bfe_u32 v{T+1}, v3, 1, 1'); a(f'v_add_u32 v{T}, v{T}, v{T+1}'); a(f'v_cvt_f32_u32 v{T}, v{T}')
    a('s_waitcnt lgkmcnt(0)')
    a('s_barrier')
    for it in range(3): a(f'ds_read_b128 {vr(140+4*it,4)}, v57 offset:{it*32*144}', 'rb')
    token(TKA)
    for l in gl: a(l, 'b0')
    a(f'v_xor_b32 v{T+1}, v{T+1}, v4')
    a(f'v_and_b32 v{T+2}, 1, v3'); a(f'v_sub_u32 v{T+1}, v{T+2}, v{T+1}'); a(f'v_cvt_f32_i32 v{T+1}, v{T+1}')
    a(f'v_fmaak_f32 v{T+1}, v{T+8}, v{T+1}, {fl(0.125)}')
    a(f'v_cvt_f32_u32 v{T+2}, s12'); a(f'v_mul_f32 v{T+2}, {fl(1/2048)}, v{T+2}')
    a(f'v_fma_f32 v{T+3}, v{T}, v{T+2}, v{T+1}')
    a(f'v_mul_f32 v{T}, {fl(0.125)}, v{T}')
    a(f'v_cvt_f32_u32 v{T+2}, v4'); a(f'v_fmaak_f32 v{T+2}, 0.5, v{T+2}, {fl(-0.25)}')
    a.waitl('rb')
    for it in range(3):
        a(f'buffer_store_dwordx4 {vr(140+4*it,4)}, v{62 if it == 2 else 61}, s[16:19], s{52+it} offen sc1', 'wwst')
    for p in range(4):
        a(f'v_add_f32 v{T+5}, v{T+3}, v{T+2}'); a(f'v_cos_f32 v{T+4}, v{T+3}'); a(f'v_cos_f32 v{T+5}, v{T+5}')
        a(f'v_add_f32 v{T+3}, v{T+3}, v{T}'); a(f'v_cvt_pk_bf16_f32 v{A3+p}, v{T+4}, v{T+5}')
    a('v_cmp_eq_u32 vcc, 0, v4')
    a(f'v_sub_u32 v{T+1}, 640, v{T+11}')
    a(f'v_cndmask_b32 v{T+2}, v{T+1}, v{T+11}, vcc')
    a(f'v_mov_b32 v{T+3}, 0xfffff800')
    a(f'v_mov_b32 v{T+4}, 0x800')
    a(f'v_cndmask_b32 v{T+3}, v{T+3}, v{T+4}, vcc')
    a(f'v_lshlrev_b32 v{T+2}, 4, v{T+2}')
    a(f'v_add_u32 v{T+2}, {T2L}, v{T+2}')
    a(f'v_add_u32 v{AD+4}, v{T+2}, v{T+3}')
    a(f'v_add_u32 v{AD+5}, v{AD+4}, v{T+3}')
    a(f'v_mov_b32 v{T+4}, {T2L}')
    a(f'v_cmp_eq_u32 vcc, 0, v{T+11}')
    a(f'v_cndmask_b32 v{AD+3}, v{T+2}, v{T+4}, vcc')
    a(f'v_mov_b32 v{PK+10}, 0')
    a(f'v_mov_b32 v{PK+11}, 0')
    a('s_mul_i32 s62, s15, 12288')
    a('s_mul_i32 s35, s3, 3072')
    a('s_add_u32 s62, s62, s35')
    a(f's_add_u32 s62, s62, {VP}')
    a(f'v_add_u32 v{T}, s63, v2')
    a('s_lshl_b32 s40, s12, 3')
    a('s_add_u32 s40, s40, s3')
    a('s_mul_i32 s40, s40, 1280')
    a(f's_add_u32 s40, s40, {H2}')
    a(f'v_mul_u32_u24 v{T+1}, 5120, v4')
    a(f'v_lshl_add_u32 v{T+1}, v3, 4, v{T+1}')
    a(f'v_cmp_gt_u32 vcc, {8*HD}, v3')
    a(f'v_cndmask_b32 v{T+1}, v71, v{T+1}, vcc')
    a(f'v_mul_u32_u24 v{T+2}, 5462, v1')
    a(f'v_lshrrev_b32 v{T+2}, 16, v{T+2}')
    a(f'v_mul_u32_u24 v252, {3072-192}, v{T+2}')
    a('v_add_u32 v252, v252, v2')
    a(f'v_add_u32 v{T+2}, 64, v1')
    a(f'v_mul_u32_u24 v{T+2}, 5462, v{T+2}')
    a(f'v_lshrrev_b32 v{T+2}, 16, v{T+2}')
    a(f'v_mul_u32_u24 v253, {3072-192}, v{T+2}')
    a('v_add_u32 v253, v253, v2')
    a(f'v_add_u32 v{T+2}, -32, v253')
    a('v_cmp_lt_u32 vcc, 57, v1')
    a(f'v_cndmask_b32 v253, v253, v{T+2}, vcc')
    a('s_and_b32 s32, s3, 1')
    a(f's_mul_i32 s39, s32, {80*3072}')
    a('s_mul_i32 s42, s11, 192')
    a('s_add_u32 s39, s39, s42')
    a(f's_mul_i32 s55, s32, {8*US}')
    a('s_lshr_b32 s32, s3, 1')
    a(f's_mul_i32 s32, s32, {MS}')
    a('s_add_u32 s55, s55, s32')
    def b1round(R):
        out = []
        for u in range(8):
            l = []
            if u: l.append(f's_add_u32 s39, s39, {10*3072}')
            elif R: l.append(f's_add_u32 s39, s39, {(160-70)*3072}')
            l.append(f's_add_u32 m0, s55, {(R&1)*BS + US*u}')
            out.append((l + ['buffer_load_dwordx4 v252, s[28:31], s39 offen lds'], f'b1r{R}'))
            out.append((['buffer_load_dwordx4 v253, s[28:31], s39 offen offset:1024 lds'], f'b1r{R}'))
        return out
    a('s_and_b32 s32, s2, 7')
    a('s_mul_i32 s32, s32, 24')
    a('s_add_u32 s32, s32, s61')
    a('s_lshl_b32 s32, s32, 1')
    a('s_add_u32 s14, s32, s3')
    a('s_mov_b32 s44, s6')
    a('s_mov_b32 s45, s7')
    a('s_cmp_lt_u32 s61, 24')
    a(f's_cselect_b32 s46, {1536*1280}, 0')
    a('s_cmp_lt_u32 s3, 2')
    a('s_cselect_b32 s46, s46, 0')
    a('s_mov_b32 s47, 0x20000')
    a('s_lshr_b32 s51, s14, 3')
    a(f's_mul_i32 s51, s51, {32*1280}')
    a('s_and_b32 s32, s14, 7')
    a('s_mul_i32 s32, s32, 160')
    a('s_add_u32 s51, s51, s32')
    a('s_mul_i32 s6, s3, 5120')
    a(f's_add_u32 s6, s6, {MODB}')
    for u in range(5):
        a(f'v_add_u32 v{T+7}, {64*u}, v1')
        a(f'v_mul_u32_u24 v{T+8}, 6554, v{T+7}')
        a(f'v_lshrrev_b32 v{T+8}, 16, v{T+8}')
        a(f'v_mul_u32_u24 v{T+8}, {1280-160}, v{T+8}')
        a(f'v_lshl_add_u32 v{T+2+u}, v{T+7}, 4, v{T+8}')
    st.stamp(); st.stamp('p0'); jitter(a)
    a(f's_mov_b32 s34, {POLL_MAX}')
    a.waitvm('b0')
    a('Lp0:')
    for k in range(8):
        r = 160 + 4 * k
        a(f'v_xor_b32 v{r+1}, s8, v{r+1}')
        a(f'v_xor_b32 v{r+3}, s9, v{r+3}')
        if k: a(f'v_or3_b32 v161, v161, v{r+1}, v{r+3}')
    for k in range(4): a(f'v_xor_b32 v{193+2*k}, v68, v{193+2*k}')
    a('v_or3_b32 v161, v161, v163, v193')
    a('v_or3_b32 v195, v195, v197, v199')
    a('v_or_b32 v161, v161, v195')
    a('v_cmp_ne_u32 vcc, 0, v161')
    a('s_cmp_eq_u64 vcc, 0')
    a('s_cbranch_scc1 Lp0_x')
    for l in gl: a(l); a.vmq.pop()
    a('s_waitcnt vmcnt(0)')
    a('s_sub_u32 s34, s34, 1')
    a('s_cbranch_scc0 Lp0')
    a('Lp0_x:')
    st.stamp(); st.stamp('p0'); jitter(a)
    for u in range(3):
        a.bg.append(([f'buffer_store_dwordx4 v[156:159], v{T}, s[16:19], s62 offen offset:{1024*u} sc1'], 'fill1'))
    a.bg.append(([f'buffer_store_dwordx4 v[156:159], v{T+1}, s[16:19], s40 offen sc1'], 'fill1'))
    tka = [f'buffer_load_dwordx4 v[{200+4*i}:{203+4*i}], v2, s[16:19], s48 offen offset:{1024*i} sc1' for i in range(2)]
    a(f's_mov_b32 s48, {TKA}')
    for l in tka: a.bg.append(([l], 'tka'))
    if PF1 == 1: pf1(0, True)
    for u in range(5):
        a.bg.append(([f's_add_u32 m0, s6, {1024*u}', f'buffer_load_dwordx4 v{T+2+u}, s[44:47], s51 offen lds'], 'wdu'))
    a.bg += b1round(0)
    for b in (160, 162, 176, 178):
        a(f'v_add_f32 v{b}, v{b}, v{b+4}'); a(f'v_add_f32 v{b+8}, v{b+8}, v{b+12}')
    a('v_add_f32 v192, v192, v194'); a('v_add_f32 v196, v196, v198')
    for b in (160, 162, 176, 178): a(f'v_add_f32 v{b}, v{b}, v{b+8}')
    a('v_add_f32 v192, v192, v196')
    a('v_cvt_pk_bf16_f32 v160, v160, v162'); a('v_cvt_pk_bf16_f32 v176, v176, v178'); a('v_cvt_pk_bf16_f32 v192, v192, v192')
    a('v_and_b32 v161, s13, v160'); a('v_lshlrev_b32 v160, 16, v160')
    a('ds_write_b64 v58, v[160:161]')
    a('v_and_b32 v177, s13, v176'); a('v_lshlrev_b32 v176, 16, v176'); a('v_and_b32 v192, s13, v192')
    a('v_add_f32 v176, s49, v176'); a('v_add_f32 v177, s49, v177'); a('v_add_f32 v192, 1.0, v192')
    a('v_cvt_pk_bf16_f32 v176, v176, v177'); a('v_cvt_pk_bf16_f32 v192, v192, v192')
    a('v_and_b32 v177, s13, v176'); a('v_lshlrev_b32 v176, 16, v176'); a('v_and_b32 v192, s13, v192')
    a('ds_write_b64 v58, v[176:177] offset:2048')
    a('ds_write_b32 v69, v192')
    a.bg_issue(1)
    a.bg_every = BGK1
    a('s_waitcnt lgkmcnt(0)')
    a('s_barrier')
    for k in range(5):
        a(f'ds_read_b64 {vr(CA+2*k,2)}, v243 offset:{2560 + 8*k}')
        a(f'ds_read_b64 {vr(SA+2*k,2)}, v243 offset:{8*k}')
    for i in range(10):
        c, cs_ = pkb(CA+i); s_, ss = pkb(SA+i)
        if i % 2 == 0: a('s_waitcnt lgkmcnt(8)')
        a(f'v_pk_fma_f32 {vr(F+2*i,2)}, {vr(F+2*i,2)}, {c}, {s_} op_sel:[0,{cs_},{ss}] op_sel_hi:[1,{cs_},{ss}]')
        a(f'v_cvt_pk_bf16_f32 v{F+2*i}, v{F+2*i}, v{F+2*i+1}')
        a(f'ds_write_b32 v{AD}, v{F+2*i} offset:{144*i}')
    a('s_waitcnt lgkmcnt(0)')
    for j in range(4):
        a(f'ds_read_b128 {vr(FR+4*j,4)}, v{AD+1} offset:{32*j}')
    for j in range(4):
        a(f's_waitcnt lgkmcnt({3-j})')
        a(f'{M32} {vr(AR,16)}, {vr(FR+4*j,4)}, {vr(B1T+4*j,4)}, {"0" if j==0 else vr(AR,16)}')
        a(f'{M32} {vr(AI,16)}, {vr(FR+4*j,4)}, {vr(B1T+16+4*j,4)}, {"0" if j==0 else vr(AI,16)}')
    for r in range(0, 10, 2):
        a(f'v_pk_mul_f32 {vr(F+r,2)}, {vr(AR+r,2)}, {vr(TW+r,2)}')
        a(f'v_pk_mul_f32 {vr(F+10+r,2)}, {vr(AR+r,2)}, {vr(TW+10+r,2)} neg_lo:[1,0] neg_hi:[1,0]')
    for r in range(0, 10, 2):
        a(f'v_pk_fma_f32 {vr(F+r,2)}, {vr(AI+r,2)}, {vr(TW+10+r,2)}, {vr(F+r,2)}')
        a(f'v_pk_fma_f32 {vr(F+10+r,2)}, {vr(AI+r,2)}, {vr(TW+r,2)}, {vr(F+10+r,2)}')
        a(f'v_cvt_pk_bf16_f32 v{PK+r}, v{F+r}, v{F+10+r}')
        a(f'v_cvt_pk_bf16_f32 v{PK+r+1}, v{F+r+1}, v{F+11+r}')
    for j in range(3):
        for acc, o in ((AR, 0), (AI, 12)):
            a(f'{M32} {vr(acc,16)}, {vr(A2+o+4*j,4)}, {vr(PK+4*j,4)}, {"0" if j==0 else vr(acc,16)}')
    a.bg_every = 0
    assert not any(t in ('fill1', 'tka') for _, t in a.bg)
    a.waitvm('tka')
    tagchk(a, range(200, 208), 200)
    a('s_mov_b64 s[52:53], vcc')
    for r in range(10):
        a(f'v_cvt_pk_bf16_f32 v{F+r}, v{AR+r}, v{AI+r}')
        a(f'ds_write_b32 v{AD+2}, v{F+r} offset:{512*r}')
    a('s_waitcnt lgkmcnt(0)')
    a('s_barrier')
    for i in range(3):
        a(f'ds_read_b128 {vr(FR+4*i,4)}, v{AD+3+i}')
    token(TKB)
    accs = [AR, AI, AX]
    for i in range(3):
        a(f's_waitcnt lgkmcnt({2-i})')
        a(f'{M32} {vr(accs[i],16)}, {vr(A3,4)}, {vr(FR+4*i,4)}, 0')
    for i in range(3):
        for q in range(4):
            a(f'v_cvt_pk_bf16_f32 v{PK+4*i+q}, v{accs[i]+2*q}, v{accs[i]+2*q+1}')
        if i: a('s_add_u32 s38, s38, 4096')
        a(f'buffer_store_dwordx4 {vr(PK+4*i,4)}, v{AD+6+(i==2)}, s[16:19], s38 offen sc1', 'e1')
    st.stamp(); jitter(a)
    while any(t == 'wdu' for _, t in a.bg): a.bg_issue(1)
    G, GA_, LW, M, TW, WR, WI, D, RE, IM, T, P = 40, 52, 55, 60, 68, 76, 88, 100, 112, 124, 136, 160
    a('v_bfe_u32 v220, v1, 2, 2')
    a('v_lshrrev_b32 v221, 4, v1')
    a('v_lshl_add_u32 v220, v221, 3, v220')
    a('v_mul_u32_u24 v220, 160, v220')
    a('v_and_b32 v221, 3, v1')
    a('v_mul_u32_u24 v221, 40, v221')
    a('s_and_b32 s35, s3, 1')
    a('s_mul_i32 s35, s35, 5120')
    a(f's_add_u32 s35, s35, {MODB}')
    a('v_add3_u32 v220, v220, v221, s35')
    a('s_cmp_eq_u32 s46, 0')
    a(f's_cselect_b32 s35, {HUGE}, 0')
    a('v_add_u32 v221, s35, v2')
    a('s_and_b32 s44, s14, 7')
    a('s_mul_i32 s44, s44, 245760')
    a('s_lshr_b32 s35, s14, 3')
    a('s_mul_i32 s35, s35, 5120')
    a('s_add_u32 s44, s44, s35')
    a(f's_add_u32 s44, s44, {WD}')
    a('s_add_u32 s45, s44, 4096')
    a.waitvm('wdu')
    for t in range(5):
        for eta in range(2): a(f'ds_read_b64_tr_b16 {vr(192+4*t+2*eta,2)}, v220 offset:{eta*640 + 8*t}')
    a('s_waitcnt lgkmcnt(0)')
    for t in range(5): a(f'buffer_store_dwordx4 {vr(192+4*t,4)}, v221, s[16:19], s{44+t//4} offen offset:{1024*(t%4)} sc1', 'wdst')
    a.bg_every = BGW
    a('v_and_b32 v58, 15, v1')
    a('v_lshrrev_b32 v59, 4, v1')
    a('v_cvt_f32_u32 v58, v58')
    a('v_cvt_f32_u32 v59, v59')
    a(f'v_mul_f32 v{T}, {fl(1/16)}, v58')
    a(f'v_mul_f32 v59, 4.0, v59')
    a(f'v_mul_f32 v{T+1}, v59, v{T}')
    for i in range(4):
        fin = cs_pair(a, T+1, T+2, T+3, M+i, M+4+i)
        a(f'v_mul_f32 v{T+4}, {fl(1/16)}, v{T+1}')
        a(f'v_add_f32 v{T+1}, v{T+1}, v{T}')
        fin()
        a(f'v_cos_f32 v{TW+i}, v{T+4}')
        a(f'v_sin_f32 v{TW+4+i}, v{T+4}')
    a('s_mul_i32 s35, s3, 192')
    for u in range(3):
        a(f'v_add_u32 v{T}, s35, v1')
        if u: a(f'v_add_u32 v{T}, {64*u}, v{T}')
        a(f'v_mul_u32_u24 v{T+1}, 43691, v{T}')
        a(f'v_lshrrev_b32 v{T+1}, 17, v{T+1}')
        a(f'v_mul_u32_u24 v{T+2}, 3, v{T+1}')
        a(f'v_sub_u32 v{T+2}, v{T}, v{T+2}')
        a(f'v_mul_u32_u24 v{LW+u}, 4144, v{T+2}')
        a(f'v_lshl_add_u32 v{LW+u}, v{T+1}, 2, v{LW+u}')
        a(f'v_add_u32 v{LW+u}, {LB}, v{LW+u}')
        a(f'v_and_b32 v{T+3}, 0xc0, v{T+1}')
        a(f'v_and_b32 v{T+4}, 3, v{T+1}')
        a(f'v_lshl_add_u32 v{T+3}, v{T+4}, 4, v{T+3}')
        a(f'v_bfe_u32 v{T+4}, v{T+1}, 2, 4')
        a(f'v_add_u32 v{T+3}, v{T+3}, v{T+4}')
        a(f'v_mul_u32_u24 v{T+3}, {BLK}, v{T+3}')
        a(f'v_lshl_add_u32 v{T+3}, v{T+2}, 4, v{T+3}')
        a(f'v_mov_b32 v{GA_+u}, v{T+3}')
    a('s_lshl_b32 s35, s3, 10')
    a(f's_add_u32 s35, s35, {LB}')
    a('v_add_u32 v58, s35, v2')
    a('s_mul_i32 s38, s15, 48')
    a(f's_add_u32 s38, s38, {VV}')
    a('s_mul_i32 s48, s15, 12288')
    a('s_lshl_b32 s35, s3, 10')
    a('s_add_u32 s48, s48, s35')
    a(f's_add_u32 s48, s48, {WW}')
    a('s_add_u32 s49, s48, 4096')
    a('s_add_u32 s50, s48, 8192')
    a(f'v_and_b32 v{T}, 15, v1')
    a(f'v_lshlrev_b32 v{T}, 4, v{T}')
    a(f'v_mul_u32_u24 v239, 5120, v4')
    a(f'v_bfe_u32 v{T+1}, v1, 4, 1')
    a(f'v_mul_u32_u24 v{T+1}, {X1-H2}, v{T+1}')
    a(f'v_add3_u32 v239, v239, v{T}, v{T+1}')
    a('v_add_u32 v234, s63, v2')
    TRB = [254, 205, 211, 222]
    def tr_addr(t):
        B0, B1_, B2_, B3 = TRB
        a(f'v_lshrrev_b32 v{t}, 4, v1')
        a(f'v_bfe_u32 v{t+1}, v1, 2, 2')
        a(f'v_and_b32 v{t+2}, 3, v1')
        a('s_mul_i32 s35, s3, 48')
        a(f'v_lshl_add_u32 v{B0}, v{t+2}, 3, s35')
        a(f'v_lshrrev_b32 v{t+3}, 1, v{t+2}')
        a(f'v_mul_u32_u24 v{t+3}, {MS-16}, v{t+3}')
        a(f'v_add3_u32 v{B1_}, v{B0}, v{t+3}, 32')
        a(f'v_mul_u32_u24 v{t}, {US}, v{t}')
        a(f'v_mul_u32_u24 v{t+2}, 192, v{t+1}')
        a(f'v_lshrrev_b32 v{t+3}, 1, v{t+1}')
        a(f'v_mul_u32_u24 v{t+3}, {US-384}, v{t+3}')
        a(f'v_add_u32 v{t+2}, v{t+2}, v{t}')
        a(f'v_add3_u32 v{t+3}, v{t+3}, v{t+2}, v{t}')
        a(f'v_add_u32 v{t+3}, {8*192}, v{t+3}')
        a(f'v_add_u32 v{B2_}, v{B0}, v{t+3}')
        a(f'v_add_u32 v{B3}, v{B1_}, v{t+3}')
        a(f'v_add_u32 v{B0}, v{B0}, v{t+2}')
        a(f'v_add_u32 v{B1_}, v{B1_}, v{t+2}')
    def tr_reads(R):
        out = []
        if R: out.append(([f'v_add_u32 v{b}, {BS if R & 1 else -BS}, v{b}' for b in TRB], None))
        for jj in range(4):
            for t in range(3):
                for eta in range(2):
                    out.append(([f'ds_read_b64_tr_b16 {ar(12*(4*R+jj)+4*t+2*eta,2)}, v{TRB[t>>1]} offset:{jj*4*US+eta*768+(MS if t == 1 else 0)}'], None))
        for jj in range(2):
            for t in range(3):
                out.append(([f'ds_read_b64_tr_b16 {ar(12*(16+2*(R&1)+jj)+4*t+2*(R>>1),2)}, v{TRB[2+(t>>1)]} offset:{jj*8*US+(MS if t == 1 else 0)}'], None))
        return out
    def mix(x, y, k):
        out = []; y = list(y)
        for it in x:
            out.append(it)
            for _ in range(k):
                if y: out.append(y.pop(0))
        return out + y
    tr_addr(T)
    a.bg_issue(99); a.bg_every = 0
    st.stamp('e1')
    a('s_cmp_eq_u64 s[52:53], 0')
    a('s_cbranch_scc1 Ltka_ok')
    tokpoll(a, 'tka', TKA, 172)
    a('Ltka_ok:')
    a('s_waitcnt vmcnt(%d) lgkmcnt(0)' % (len(a.vmq) - 1 - max(i for i, t in enumerate(a.vmq) if t == 'e1')))
    st.stamp('e1'); jitter(a)
    gl = [f'buffer_load_dwordx4 {vr(G+4*u,4)}, v{GA_+u}, s[16:19], s38 offen sc1' for u in range(3)]
    tokload(a, TKB, 172, 'tkb')
    for l in gl: a(l, 'g1')
    a('v_mov_b32 v236, v240'); a('v_mov_b32 v237, v241'); a('v_mov_b32 v235, v242')
    tokpoll(a, 'tkb', TKB, 172, 'tkb')
    st.stamp('e1')
    for u in range(3):
        a(f'buffer_load_dwordx4 {vr(WRAW+4*u,4)}, v2, s[16:19], s{48+u} offen sc1', 'ww')
    poll2(a, 'p1', 'g1', gl, range(G, G+12), T)
    st.stamp(); st.stamp('e1'); jitter(a)
    for u in range(3):
        for v in range(4):
            a(f'ds_write_b32 v{LW+u}, v{G+4*u+v} offset:{1024*v}')
    a('v_lshlrev_b32 v188, 4, v0')
    a('v_add_u32 v189, 4096, v188')
    a('v_lshrrev_b32 v232, 1, v188')
    a('v_add_u32 v232, 8192, v232')
    mbl = []
    for k in range(4):
        mbl.append(([f's_mov_b32 s51, {GRB + 10240*k}', f'buffer_load_dwordx4 {ar(240+4*k,4)}, v188, s[16:19], s51 offen sc1'], 'mb'))
        mbl.append(([f'buffer_load_dwordx4 {vr(172+4*k,4)}, v189, s[16:19], s51 offen sc1'], 'mb'))
        mbl.append(([f'buffer_load_dwordx2 {vr(212+2*k,2)}, v232, s[16:19], s51 offen sc1'], 'mb'))
    r1 = b1round(1)
    if PF1: pf1(1, False, 190)
    a.bg = r1[:2]; a.bg_issue(2)
    a('s_waitcnt lgkmcnt(0)')
    a('s_barrier')
    for u in range(3): a(f'ds_read_b128 {vr(D+4*u,4)}, v58 offset:{4144*u}')
    a(f's_mov_b32 s35, {TKC}')
    a('s_mov_b64 exec, 1')
    a(f'{TOKOP} v[236:237], v235, s[16:19], s35 offen sc1')
    a('s_mov_b64 exec, -1')
    a.bg = r1[2:4]; a.bg_issue(2)
    k2bg = mix(r1[4:] + (mbl if MBK2 else []), tr_reads(0), 2)
    def mm(dataA, src, outX, outY, waits=False):
        for jb in range(3):
            if waits: a(f's_waitcnt lgkmcnt({2-jb})')
            d = vr(src + 4*jb, 4)
            for out, mt in ((outX, M), (outY, M+4)):
                o = vr(out + 4*jb, 4)
                a(f'{M16} {o}, {d}, {vr(mt,4)}, 0' if dataA else f'{M16} {o}, {vr(mt,4)}, {d}, 0')
    def cmul(cr, ci, sgn, swap):
        n1 = ' neg_lo:[1,0,0] neg_hi:[1,0,0]'
        for jb in range(3):
            for r in (0, 2):
                k = 4*jb + r
                a(f'v_pk_mul_f32 {vr(T+k,2)}, {vr(RE+k,2)}, {vr(cr(jb)+r,2)}')
                a(f'v_pk_mul_f32 {vr(T+12+k,2)}, {vr(IM+k,2)}, {vr(cr(jb)+r,2)}')
            for r in (0, 2):
                k = 4*jb + r
                a(f'v_pk_fma_f32 {vr(T+k,2)}, {vr(IM+k,2)}, {vr(ci(jb)+r,2)}, {vr(T+k,2)}' + (n1 if sgn > 0 else ''))
                a(f'v_pk_fma_f32 {vr(T+12+k,2)}, {vr(RE+k,2)}, {vr(ci(jb)+r,2)}, {vr(T+12+k,2)}' + (n1 if sgn < 0 else ''))
            for r in range(4):
                k = 4*jb + r
                if swap: a(f'v_cvt_pk_bf16_f32 v{P+k}, v{T+12+k}, v{T+k}')
                else: a(f'v_cvt_pk_bf16_f32 v{P+k}, v{T+k}, v{T+12+k}')
    mm(True, D, RE, IM, True)
    a.bg = k2bg; a.bg_every = BGK2
    cmul(lambda j: TW, lambda j: TW+4, -1, False)
    a.waitvm('ww')
    unp_w = []
    for k in range(12):
        unp_w += [f'v_lshlrev_b32 v{WR+k}, 16, v{WRAW+k}', f'v_and_b32 v{WI+k}, s13, v{WRAW+k}']
    for l in unp_w[:12]: a(l)
    mm(False, P, RE, IM)
    for l in unp_w[12:]: a(l)
    sv, a.bg_every = a.bg_every, 0
    a('s_cmp_eq_u32 s15, 0')
    a('s_cselect_b32 s52, 0.5, 1.0')
    a('s_cmp_eq_u32 s15, 213')
    a('s_cselect_b32 s54, 0.5, 1.0')
    a('s_cselect_b32 s53, 0.5, s52')
    a('s_cmp_eq_u32 s53, 1.0')
    a('s_cbranch_scc1 Lnosc')
    for k in range(12):
        a(f'v_mul_f32 v{WR+k}, s{52+k//4}, v{WR+k}')
        a(f'v_mul_f32 v{WI+k}, s{52+k//4}, v{WI+k}')
    a('Lnosc:')
    a.bg_every = sv
    cmul(lambda j: WR+4*j, lambda j: WI+4*j, +1, True)
    mm(True, P, IM, RE)
    cmul(lambda j: TW, lambda j: TW+4, +1, True)
    mm(False, P, IM, RE)
    a.bg_issue(99); a.bg_every = 0
    for u in range(3):
        for r in range(4): a(f'v_cvt_pk_bf16_f32 v{D+4*u+r}, v{RE+4*u+r}, v{IM+4*u+r}')
        a(f'ds_write_b128 v58, {vr(D+4*u,4)} offset:{4144*u}')
    a('s_waitcnt lgkmcnt(0)')
    a('s_barrier')
    for u in range(3):
        for v in range(4):
            a(f'ds_read_b32 v{G+4*u+v}, v{LW+u} offset:{1024*v}')
    for u in range(3):
        a(f's_waitcnt lgkmcnt({8-4*u})')
        a(f'buffer_store_dwordx4 {vr(G+4*u,4)}, v234, s[16:19], s62 offen offset:{1024*u} sc1', 'e2')
    st.stamp(); jitter(a)
    DV, GA_, LW, MA, TW, A3, AR, AI, AX, PK, XA, XB, GAv, CB, SB, T = 172, 52, 55, 60, 84, 116, 120, 136, 152, 184, 200, 206, 40, 212, 224, 244
    FA, FB = 152, 162
    a(f'buffer_load_dwordx4 {vr(XA,4)}, v6, s[20:23], s36 offen', 'x3')
    a(f'buffer_load_dword v{XA+4}, v6, s[20:23], s36 offen offset:16', 'x3')
    a(f'buffer_load_dwordx4 {vr(XB,4)}, v6, s[20:23], s37 offen', 'x3')
    a(f'buffer_load_dword v{XB+4}, v6, s[20:23], s37 offen offset:16', 'x3')
    if not MBK2: a.bg = list(mbl); a.bg_issue(99)
    tokload(a, TKC, 152, 'tkc')
    a.bg = b1round(2); a.bg_every = BGW2
    a('s_mul_i32 s35, s3, 3584')
    a(f's_add_u32 s35, s35, {L3}')
    a(f'v_mul_u32_u24 v{T}, 112, v3')
    a(f'v_lshlrev_b32 v{T+1}, 3, v4')
    a(f'v_sub_u32 v{T+1}, 88, v{T+1}')
    a('v_cmp_eq_u32 vcc, 32, v1')
    a(f'v_mov_b32 v{T+2}, 96')
    a(f'v_cndmask_b32 v{T+1}, v{T+1}, v{T+2}, vcc')
    a(f'v_add3_u32 v{T+1}, v{T+1}, v{T}, s35')
    a(f'v_mov_b32 v{T+2}, 0')
    a(f'v_mov_b32 v{T+3}, 0')
    a(f'ds_write_b64 v{T+1}, {vr(T+2,2)}')
    a(f'v_lshl_add_u32 v58, v4, 4, v{T}')
    a('v_add_u32 v58, s35, v58')
    a(f'v_add_u32 v59, {L3+96}, v{T}')
    a('s_lshl_b32 s35, s3, 5')
    a('v_cmp_eq_u32 vcc, 0, v4')
    for i in range(3):
        a(f'v_add_u32 v{T+2}, s35, v3')
        if i: a(f'v_add_u32 v{T+2}, {128*i}, v{T+2}')
        a(f'v_lshl_add_u32 v{T+5}, v{T+2}, 1, v4')
        a(f'v_mul_u32_u24 v{T+6}, 43691, v{T+5}')
        a(f'v_lshrrev_b32 v{T+6}, 17, v{T+6}')
        a(f'v_mul_u32_u24 v{GA_+i}, {12288-48}, v{T+6}')
        a(f'v_lshl_add_u32 v{GA_+i}, v{T+5}, 4, v{GA_+i}')
        a(f'v_sub_u32 v{T+3}, 640, v{T+2}')
        a(f'v_cndmask_b32 v{T+3}, v{T+3}, v{T+2}, vcc')
        a(f'v_and_b32 v{T+4}, 31, v{T+3}')
        a(f'v_mul_u32_u24 v{T+4}, 112, v{T+4}')
        a(f'v_lshrrev_b32 v{T+3}, 5, v{T+3}')
        a(f'v_lshl_add_u32 v{LW+i}, v{T+3}, 2, v{T+4}')
        a(f'v_add_u32 v{LW+i}, {L3}, v{LW+i}')
        if i == 2:
            a(f'v_mov_b32 v{T+4}, 641')
            a(f'v_cmp_eq_u32 s[46:47], v{T+4}, v{T+5}')
            a(f'v_mov_b32 v{T+3}, {L3+84}')
            a(f'v_cndmask_b32 v{LW+2}, v{LW+2}, v{T+3}, s[46:47]')
            a(f'v_cmp_lt_u32 s[46:47], v{T+4}, v{T+5}')
            a(f'v_mov_b32 v{T+3}, {HUGE}')
            a(f'v_cndmask_b32 v{LW+2}, v{LW+2}, v59, s[46:47]')
            a(f'v_cndmask_b32 v{GA_+2}, v{GA_+2}, v{T+3}, s[46:47]')
    a('s_and_b32 s45, s12, 0xc0')
    a('s_and_b32 s35, s12, 15')
    a('s_lshl_b32 s35, s35, 2')
    a('s_add_u32 s45, s45, s35')
    a('s_bfe_u32 s35, s12, 0x20004')
    a('s_add_u32 s45, s45, s35')
    a('s_mul_i32 s45, s45, 48')
    a(f's_add_u32 s45, s45, {VP}')
    a(f'v_bfe_u32 v{T}, v3, 1, 1')
    a(f'v_bfe_u32 v{T+1}, v3, 3, 1')
    a(f'v_lshl_add_u32 v{T}, v{T+1}, 1, v{T}')
    a(f'v_lshl_add_u32 v{T}, v{T}, 8, s12')
    a(f'v_cvt_f32_u32 v{T}, v{T}')
    a(f'v_mul_f32 v{T}, {fl(1/2048)}, v{T}')
    a(f'v_bfe_u32 v{T+1}, v3, 2, 1')
    a(f'v_cvt_f32_u32 v{T+1}, v{T+1}')
    a(f'v_mov_b32 v{T+2}, {fl(-0.25)}')
    a(f'v_fmaak_f32 v{T+1}, v{T+2}, v{T+1}, {fl(0.125)}')
    a(f'v_and_b32 v{T+2}, 1, v3')
    a(f'v_cvt_f32_u32 v{T+2}, v{T+2}')
    a(f'v_mul_f32 v{T+2}, v{T+2}, v{T+1}')
    a(f'v_mul_f32 v{T+2}, -2.0, v{T+2}')
    a(f'v_cvt_f32_u32 v{T+7}, v4')
    a(f'v_mul_f32 v{T+7}, 4.0, v{T+7}')
    a(f'v_fma_f32 v{T+2}, v{T+7}, v{T}, v{T+2}')
    for i in range(4):
        a(f'v_{"sub" if i & 1 else "add"}_f32 v{T+3}, v{T+2}, v{T+1}')
        a(f'v_cos_f32 v{T+4}, v{T+3}')
        a(f'v_sin_f32 v{T+5}, v{T+3}')
        a(f'v_add_f32 v{T+2}, v{T+2}, v{T}')
        a(f'v_cvt_pk_bf16_f32 v{A3+i}, v{T+4}, -v{T+5}')
    slot20(a, T, T+1)
    a(f'v_cvt_f32_u32 v{T}, v{T}')
    a(f'v_mul_f32 v{T}, {fl(1/20)}, v{T}')
    a(f'v_mul_f32 v{T+1}, 4.0, v{T}')
    a(f'v_mul_f32 v{T+2}, v{T+7}, v{T}')
    a(f'v_mul_f32 v{T+6}, {fl(10.0)}, v{T}')
    for j in range(3):
        for i in range(4):
            src = T+2
            if j == 2 and i == 1:
                a(f'v_cndmask_b32 v{T+3}, v{T+6}, v{T+2}, vcc'); src = T+3
            fin = cs_pair(a, src, T+4, T+5, MA+4*j+i, MA+12+4*j+i, inv=True)
            a(f'v_add_f32 v{T+2}, v{T+2}, v{T}')
            if i == 3: a(f'v_add_f32 v{T+2}, v{T+2}, v{T+1}')
            fin()
    a.bg_issue(99); a.bg_every = 0
    a.waitvm('mb')
    for k in range(16): a(f'v_accvgpr_read_b32 v{120+k}, a{240+k}')
    for b in (120, 172):
        for o in (0, 2):
            a(f'v_pk_add_f32 {vr(b+o,2)}, {vr(b+o,2)}, {vr(b+4+o,2)}'); a(f'v_pk_add_f32 {vr(b+8+o,2)}, {vr(b+8+o,2)}, {vr(b+12+o,2)}')
        for o in (0, 2): a(f'v_pk_add_f32 {vr(b+o,2)}, {vr(b+o,2)}, {vr(b+8+o,2)}')
    a('v_pk_add_f32 v[212:213], v[212:213], v[214:215]'); a('v_pk_add_f32 v[216:217], v[216:217], v[218:219]'); a('v_pk_add_f32 v[212:213], v[212:213], v[216:217]')
    def rnd(r):
        a(f'v_cvt_pk_bf16_f32 v{r}, v{r}, v{r+1}'); a(f'v_and_b32 v{r+1}, s13, v{r}'); a(f'v_lshlrev_b32 v{r}, 16, v{r}')
    for r in (120, 122, 172, 174, 212): rnd(r)
    a('v_add_u32 v124, -64, v0')
    a('v_cmp_gt_u32 vcc, 0xa0, v124')
    a('v_cndmask_b32 v124, 0, 1.0, vcc')
    for k in range(4): a(f'v_add_f32 v{172+k}, v124, v{172+k}')
    rnd(172); rnd(174)
    a(f'v_add_u32 v188, {MODB}, v188')
    a(f'v_add_u32 v232, {MODB}, v232')
    a('ds_write_b128 v188, v[120:123]')
    a('ds_write_b128 v188, v[172:175] offset:4096')
    a('ds_write_b64 v232, v[212:213]')
    st.stamp('e2')
    a.waitvm('e2')
    gl = [f'buffer_load_dwordx4 {vr(DV+4*i,4)}, v{GA_+i}, s[16:19], s45 offen sc1' for i in range(3)]
    for l in gl: a(l, 'g2')
    a('s_waitcnt lgkmcnt(0)')
    a('s_barrier')
    st.stamp('e2')
    a.bg = tr_reads(1); a.bg_every = 2
    a(f'v_mul_f32 v{T}, {fl(1/32)}, v{T}')
    a(f'v_mul_f32 v{T+1}, 4.0, v{T}')
    a(f'v_mul_f32 v{T+2}, v{T+7}, v{T}')
    tw3 = []
    for r in range(16):
        tw3 += [f'v_cos_f32 v{TW+r}, v{T+2}', f'v_sin_f32 v{TW+16+r}, v{T+2}', f'v_add_f32 v{T+2}, v{T+2}, v{T}']
        if (r & 3) == 3: tw3.append(f'v_add_f32 v{T+2}, v{T+2}, v{T+1}')
    for l in tw3: a(l)
    a.bg_issue(99); a.bg_every = 0
    a('s_lshr_b32 s14, s12, 3')
    a('s_and_b32 s15, s12, 7')
    a('s_lshl_b32 s35, s15, 2')
    a('s_add_u32 s35, s35, s3')
    a('s_mul_i32 s35, s35, 61440')
    a(f's_add_u32 s35, s35, {WD}')
    a('s_add_u32 s20, s4, s35')
    a('s_addc_u32 s21, s5, 0')
    a('s_mov_b32 s22, 61440')
    a('s_and_b32 s53, s2, 1')
    a(f's_mul_i32 s53, s53, {4*245760}')
    a(f's_mul_i32 s35, s61, {240*128}')
    a('s_add_u32 s53, s53, s35')
    a(f's_add_u32 s53, s53, {WD}')
    a('v_lshlrev_b32 v242, 7, v0')
    a(f'v_add_u32 v241, {MODB}, v7')
    a('s_add_u32 s41, s40, 5120')
    a(f's_add_u32 s50, s40, {X1-H2}')
    a('s_add_u32 s51, s50, 5120')
    tokpoll(a, 'tkc', TKC, 152, 'tkc')
    for dst, vec in ((GAv, 0), (SB, 1), (CB, 2)):
        for k in range(5): a(f'ds_read_b64 {vr(dst+2*k,2)}, v241 offset:{2560*vec + 8*k}')
    a('s_waitcnt lgkmcnt(10)')
    for k in range(10): a(f'v_mul_f32 v{GAv+k}, {fl(1.0/(2048*640))}, v{GAv+k}')
    st.stamp('e2')
    poll2(a, 'p2', 'g2', gl, range(DV, DV+12), T+3)
    st.stamp(); st.stamp('e2'); jitter(a)
    if PF2: a('buffer_load_dword v255, v242, s[16:19], s53 offen sc1')
    accs = [AR, AI, AX]
    for i in range(3):
        a(f'{M32} {vr(accs[i],16)}, {vr(A3,4)}, {vr(DV+4*i,4)}, 0')
    for i in range(3):
        for p in range(4):
            a(f'v_cvt_pk_bf16_f32 v{PK+4*i+p}, v{accs[i]+2*p}, v{accs[i]+2*p+1}')
            a(f'ds_write_b32 v{LW+i}, v{PK+4*i+p} offset:{3584*p}')
    a('s_waitcnt lgkmcnt(0)')
    a('s_barrier')
    for j in range(3):
        a(f'ds_read_b128 {vr(DV+4*j,4)}, v58 offset:{32*j}')
    for j in range(3):
        a(f's_waitcnt lgkmcnt({2-j})')
        for acc, o in ((AR, 0), (AI, 12)):
            a(f'{M32} {vr(acc,16)}, {vr(DV+4*j,4)}, {vr(MA+o+4*j,4)}, {"0" if j==0 else vr(acc,16)}')
    a.bg = mix(b1round(3), tr_reads(2), 2); a.bg_every = BGK3
    for r in range(0, 16, 2):
        a(f'v_pk_mul_f32 {vr(AX+r,2)}, {vr(AR+r,2)}, {vr(TW+r,2)}')
        a(f'v_pk_mul_f32 {vr(MA+r,2)}, {vr(AR+r,2)}, {vr(TW+16+r,2)}')
    for r in range(0, 16, 2):
        a(f'v_pk_fma_f32 {vr(AX+r,2)}, {vr(AI+r,2)}, {vr(TW+16+r,2)}, {vr(AX+r,2)} neg_lo:[1,0,0] neg_hi:[1,0,0]')
        a(f'v_pk_fma_f32 {vr(MA+r,2)}, {vr(AI+r,2)}, {vr(TW+r,2)}, {vr(MA+r,2)}')
        a(f'v_cvt_pk_bf16_f32 v{PK+r}, v{MA+r}, v{AX+r}')
        a(f'v_cvt_pk_bf16_f32 v{PK+r+1}, v{MA+r+1}, v{AX+r+1}')
    def unp(X, Fd):
        l = []
        for i in range(5):
            l += [f'v_lshlrev_b32 v{Fd+2*i}, 16, v{X+i}', f'v_and_b32 v{Fd+2*i+1}, s13, v{X+i}']
        return l
    misc = unp(XA, FA) + unp(XB, FB)
    for j in range(4):
        for acc, o in ((AI, 0), (AR, 16)):
            a(f'{M32} {vr(acc,16)}, {vr(PK+4*j,4)}, {vr(B1T+o+4*j,4)}, {"0" if j==0 else vr(acc,16)}')
            for _ in range(3):
                if misc: a(misc.pop(0))
    for i in range(0, 10, 2):
        a(f'v_pk_fma_f32 {vr(FB+i,2)}, {vr(AI+i,2)}, {vr(GAv+i,2)}, {vr(FB+i,2)}')
    for i in range(0, 10, 2):
        a(f'v_pk_fma_f32 {vr(FA+i,2)}, {vr(AR+i,2)}, {vr(GAv+i,2)}, {vr(FA+i,2)}')
    for i in range(5):
        a(f'v_cvt_pk_bf16_f32 v{XA+i}, v{FA+2*i}, v{FA+2*i+1}')
        a(f'v_cvt_pk_bf16_f32 v{XB+i}, v{FB+2*i}, v{FB+2*i+1}')
    TL = 196
    fill = unp(XA, FA) + unp(XB, FB) + [f'v_mov_b32 v{TL+2}, v{XA+4}', f'v_mov_b32 v{TL+3}, v{XB+4}']
    ln_stats(a, XA, XB, T, 44, fill)
    a.bg_every = 0
    for Fd, b, P0 in ((FA, 0, PK), (FB, 1, PK+4)):
        for i in range(0, 10, 2):
            a(f'v_pk_fma_f32 {vr(Fd+i,2)}, {vr(Fd+i,2)}, {vr(T,2)}, {vr(T+2,2)} op_sel:[0,{b},{b}] op_sel_hi:[1,{b},{b}]')
        for i in range(0, 10, 2):
            a(f'v_pk_fma_f32 {vr(Fd+i,2)}, {vr(Fd+i,2)}, {vr(CB+i,2)}, {vr(SB+i,2)}')
        for i in range(4):
            a(f'v_cvt_pk_bf16_f32 v{P0+i}, v{Fd+2*i}, v{Fd+2*i+1}')
        a(f'buffer_store_dwordx4 {vr(P0,4)}, v238, s[16:19], s{40+b} offen sc1', 'e3')
        a(f'v_cvt_pk_bf16_f32 v{TL+b}, v{Fd+8}, v{Fd+9}')
    a(f'v_permlane16_swap_b32 v{TL}, v{TL+2}')
    a(f'v_permlane16_swap_b32 v{TL+1}, v{TL+3}')
    a(f'v_permlane32_swap_b32 v{TL}, v{TL+1}')
    a(f'v_permlane32_swap_b32 v{TL+2}, v{TL+3}')
    a(f'buffer_store_dwordx4 {vr(TL,4)}, v239, s[16:19], s40 offen offset:1024 sc1', 'e3')
    rest3 = [f'buffer_store_dwordx4 {vr(XA,4)}, v238, s[16:19], s50 offen sc1', f'buffer_store_dwordx4 {vr(XB,4)}, v238, s[16:19], s51 offen sc1']
    st.stamp(); jitter(a)
    a.bg_issue(99)
    ACC, FR = 40, 136
    SS = [168, 88, 104, 120]
    NS = 9
    KM = 20 - KT
    def quad(f2): return ('a', 240 + 4*f2) if f2 < 4 else ('v', 8 + 4*(f2-4)) if f2 < 12 else ('a', 4*(f2-12))
    def b2(f2):
        k, r = quad(f2)
        a(f's_movk_i32 s39, {(f2 // 4) * 4096 - 30720}')
        a(f'buffer_load_dwordx4 {vr(r,4,k)}, v235, s[20:23], s39 offen offset:{(f2%4)*1024} sc1', f'b2_{f2}') if False else None
    def b2(f2):
        k, r = quad(f2)
        a(f's_mov_b32 s39, {(f2 // 4) * 4096}')
        a(f'buffer_load_dwordx4 {vr(r,4,k)}, v2, s[20:23], s39 offen offset:{(f2%4)*1024} sc1', f'b2_{f2}')
    a.waitvm('b1r3')
    a('s_barrier')
    st.stamp('g1')
    trl = tr_reads(3)
    for k in range(NPRE):
        b2(k)
        a.bg = trl[:3]; trl = trl[3:]; a.bg_issue(3)
    a.bg = trl
    a.bg_every = 1
    a('v_lshrrev_b32 v226, 3, v1')
    a('v_and_b32 v227, 7, v1')
    a('v_xor_b32 v228, v226, v227')
    a('v_mul_u32_u24 v232, 1280, v226')
    a('v_lshl_add_u32 v232, v228, 4, v232')
    a('s_lshl_b32 s44, s10, 2')
    a('s_add_u32 s44, s44, s3')
    a(f's_mul_i32 s44, s44, {32*1280}')
    a(f's_add_u32 s44, s44, {H2}')
    for i in range(1, 4): a(f's_add_u32 s{44+i}, s44, {i*8*1280}')
    def aloads(p): return [f'buffer_load_dwordx4 {vr(SS[p]+4*i,4)}, v232, s[16:19], s{44+i} offen offset:{128*p} sc1' for i in range(4)]
    hl_, hr_ = [], []
    for p in range(HD): hl_ += aloads(p); hr_ += list(range(SS[p], SS[p] + 16))
    a('v_mov_b32 v240, s8')
    a('v_mov_b32 v241, s9')
    a('v_mov_b32 v242, 0')
    a('s_lshl_b32 s52, s12, 2')
    a('s_add_u32 s52, s52, s3')
    a('s_lshl_b32 s52, s52, 3')
    a(f's_add_u32 s52, s52, {FL3}')
    a('s_lshl_b32 s53, s10, 9')
    a(f's_add_u32 s53, s53, {FL3}')
    a('v_lshlrev_b32 v243, 3, v1')
    def flagstore(sreg):
        a('s_mov_b64 exec, 1')
        a(f'{TOKOP} v[240:241], v242, s[16:19], s{sreg} offen sc1')
        a('s_mov_b64 exec, -1')
    a.bg_issue(99); a.bg_every = 0
    a.waitvm('e3')
    flagstore(52)
    for l in hl_: a(l, 'hd')
    for l in rest3: a(l, 'e3b')
    a('s_lshl_b32 s38, s3, 12')
    a('v_add_u32 v233, s38, v2')
    a('v_lshrrev_b32 v226, 4, v1')
    a('v_xor_b32 v228, v226, v227')
    a('v_and_b32 v229, 15, v1')
    a('v_lshlrev_b32 v244, 7, v229')
    a('v_lshl_add_u32 v244, v228, 4, v244')
    a('v_xor_b32 v245, 64, v244')
    for k in range(4): a(f'v_add_u32 v{246+k}, 0x10000, v{244+k}')
    a('v_lshlrev_b32 v229, 4, v229')
    a('v_and_b32 v228, 1, v226')
    a('v_mul_u32_u24 v230, 49152, v228')
    a('v_lshl_add_u32 v230, v4, 8, v230')
    a('v_add_u32 v230, v230, v229')
    a('v_mul_u32_u24 v231, 49152, v4')
    a('v_lshl_add_u32 v231, v228, 3, v231')
    a('v_add_u32 v231, v231, v229')
    a('s_lshl_b32 s35, s11, 2')
    a('s_add_u32 s35, s35, s3')
    a('s_mul_i32 s48, s35, 768')
    a('s_mul_i32 s41, s10, 393216')
    a('s_add_u32 s48, s48, s41')
    a(f's_add_u32 s48, s48, {HH}')
    for P in range(1, 4): a(f's_add_u32 s{48+P}, s48, {98304*P}')
    a('s_lshl_b32 s41, s10, 6')
    a('s_add_u32 s41, s41, s35')
    a('s_lshl_b32 s41, s41, 3')
    a(f's_add_u32 s41, s41, {FLH}')
    a('s_lshr_b32 s35, s14, 1')
    a('s_mul_i32 s56, s35, 393216')
    a('s_and_b32 s42, s14, 1')
    a('s_mul_i32 s42, s42, 49152')
    a('s_add_u32 s56, s56, s42')
    a('s_mul_i32 s42, s3, 12288')
    a('s_add_u32 s56, s56, s42')
    a(f's_add_u32 s56, s56, {HH}')
    a('s_add_u32 s57, s56, 4096')
    a('s_add_u32 s58, s56, 8192')
    a('s_lshl_b32 s59, s35, 9')
    a(f's_add_u32 s59, s59, {FLH}')
    a('s_lshl_b32 s60, s35, 4')
    a('s_lshl_b32 s42, s3, 2')
    a('s_add_u32 s60, s60, s42')
    a('s_and_b32 s42, s14, 1')
    a('s_lshl_b32 s42, s42, 1')
    a('s_add_u32 s60, s60, s42')
    a(f's_mul_i32 s62, s60, {8*1280}')
    a(f's_add_u32 s62, s62, {X1}')
    a('s_lshl_b32 s61, s15, 7')
    a('s_add_u32 s61, s61, s62')
    a('s_and_b32 s42, s15, 3')
    a('s_lshl_b32 s42, s42, 6')
    a('s_add_u32 s62, s62, s42')
    a('s_and_b32 s42, s15, 4')
    a('s_lshl_b32 s42, s42, 1')
    a('s_add_u32 s62, s62, s42')
    for i in range(4): a(f'v_mov_b32 v{236+i}, -1')
    for i in range(1, 4): a(f'v_add_u32 v{225+i}, {98304*i}, v2')
    a('s_waitcnt lgkmcnt(0)')
    a('s_barrier')
    st.stamp('g1')
    poll2(a, 'p3', 'hd', hl_, hr_, 250)
    st.stamp(); st.stamp('g1'); jitter(a)
    aw = lambda p, i: f'ds_write_b128 v233, {vr(SS[p]+4*i,4)} offset:{p*16384 + 1024*i}'
    for i in range(4): a(aw(0, i), 'aw0')
    a(f'v_add_u32 v232, {128*(HD-1)}, v232')
    a.waitl('aw0'); a('s_barrier')
    st.stamp('g1')
    steps = [('g1', j, nt) for j in range(KM) for nt in range(8)]
    steps += [('g1', j, 2*P+e) for P in range(4) for j in range(KM, 20) for e in range(2)]
    N1 = len(steps)
    steps += [('g2', 0, j) for j in range(JS)] + [('g2', 1, j) for j in range(JS)] + [('g2', 0, j) for j in range(JS, 12)] + [('g2', 1, j) for j in range(JS, 12)]
    steps += [('g2', i, j) for i in (2, 3) for j in range(12)]
    NSTEP = len(steps)
    sidx = {st_: k for k, st_ in enumerate(steps)}
    mcount = [0]
    for k, st_ in enumerate(steps): mcount.append(mcount[-1] + (3 if st_[0] == 'g1' else 5))
    def read(s):
        _, j, nt = steps[s]; off = ((j >> 1) % NS) * 16384
        a(f'ds_read_b128 {vr(FR+4*(s%16),4)}, v{244 + (j&1) + 2*(off>>16)} offset:{(off & 0xffff) + nt*2048}', f'r{s}')
    pre = {}; ev = {}; items = []
    def at(d, s, f): d.setdefault(s, []).append(f)
    L = lambda line, tag=None: (lambda: a(line, tag))
    def item(avail, dl, f): items.append([avail, dl, len(items), f])
    for p in range(1, HD):
        for i in range(4): at(ev, p, L(aw(p, i), f'aw{p}'))
    def vis(tags_vm, tags_l):
        def f():
            for t in tags_l: a.waitl(t)
            for t in tags_vm:
                assert a.vmq.count(t) == 4 or DROP, t
                a.waitvm(t)
            a('s_barrier')
        return f
    visof = {}
    for k, p in enumerate(VIS):
        last = (VIS[k+1] if k + 1 < len(VIS) else 10) - 1
        sv = min(sidx[('g1', 2*p, 0)] - 8, N1)
        for q in range(p, last + 1): visof[q] = sv
        at(pre, sv, vis([f'A{last}'] if last >= HD else [], [f'aw{HD-1}'] if p < HD else []))
    def flagwait(name, tag, ld):
        def f():
            a.waitvm(tag)
            a(f's_mov_b32 s34, {POLL_MAX}')
            a(f'L{name}:')
            tagchk(a, [252, 253], 252)
            a('s_cmp_eq_u64 vcc, 0')
            a(f's_cbranch_scc1 L{name}_x')
            a(ld); a.vmq.pop()
            a('s_waitcnt vmcnt(0)')
            a('s_sub_u32 s34, s34, 1')
            a(f's_cbranch_scc0 L{name}')
            a(f'L{name}_x:')
        return f
    fl3 = 'buffer_load_dwordx2 v[252:253], v243, s[16:19], s53 offen sc1'
    at(ev, F3AT - 14, L(fl3, 'fl3'))
    at(pre, F3AT, flagwait('f3', 'fl3', fl3))
    for p in range(HD, 10):
        for i in range(4):
            def f(i=i, p=p):
                if i == 0: a('v_add_u32 v232, 128, v232')
                a(f's_add_u32 m0, s38, {(p % NS)*16384 + 1024*i}')
                a(f'buffer_load_dwordx4 v232, s[16:19], s{44+i} offen sc1 lds', f'A{p}')
            item(F3AT if p < NS else max(F3AT, visof[VIS[1]]), visof[p] - LAT, f)
    assert VIS[1] >= 2
    PS = 2 * KT
    for P in range(4):
        item(0, HFD, L(f'buffer_store_dwordx4 v[236:239], v230, s[16:19], s{48+P} offen sc1', 'hfill'))
        item(0, HFD, L(f'buffer_store_dwordx2 v[236:237], v231, s[16:19], s{48+P} offen offset:512 sc1', 'hfill'))
    assert HFF > F3AT
    def hff():
        assert a.vmq.count('hfill') == 8
        a.waitvm('hfill'); flagstore(41)
    at(pre, HFF, hff)
    flh = 'buffer_load_dwordx2 v[252:253], v243, s[16:19], s59 offen sc1'
    at(ev, FHAT - 16, L(flh, 'flh'))
    at(pre, FHAT, flagwait('fh', 'flh', flh))
    for f2 in range(NPRE, 60):
        k = (f2 - 12) // 3 if f2 >= 12 else -1
        free = 8 * (k + 1) if k < KM else 8*KM + 3*PS + 2*(k - KM + 1)
        item(free, sidx[('g2', 0, f2 // 5)] - 1 + 0.01 * f2, (lambda f2=f2: b2(f2)))
    HF = [40, 136, 88, 40]
    XR, GB, ACC2 = 136, 148, 184
    def hl(i, j):
        return f'buffer_load_dwordx4 {vr(HF[i]+4*j,4)}, v{2 if i == 0 else 225+i}, s[16:19], s{56+j//4} offen offset:{1024*(j%4)} sc1'
    endof = {i: sidx[('g2', i, 11)] for i in range(4)}
    hav = [max(FHAT, 8*KM + PS + 12 + HVIS), N1 + H1A, N1 + H2A, max(endof[0] + 3, N1 + H3A)]
    for i in range(4):
        for j in range(12):
            av = hav[i]
            if i == 0 and j >= 6: av = max(av, 8*KM + 2*PS + 13)
            item(av, sidx[('g2', i, j)] - 1.5, L(hl(i, j), f'h{i}_{j}'))
    def epi(P):
        A_, B_ = ACC + 24*P, ACC + 24*P + 12
        E = 208 + 8 * (P & 1)
        l = [(f'v_permlane32_swap_b32 v{A_+8+r}, v{B_+8+r}', None) for r in range(4)]
        for b in (A_, B_, A_+8):
            l += [(f'v_max_f32 v{b+r}, 0, v{b+r}', None) for r in range(4)]
        for k, (g_, u_) in enumerate(((A_, A_+4), (B_, B_+4), (A_+8, B_+8))):
            l += [(f'v_pk_mul_f32 {vr(g_,2)}, {vr(g_,2)}, {vr(u_,2)}', None), (f'v_pk_mul_f32 {vr(g_+2,2)}, {vr(g_+2,2)}, {vr(u_+2,2)}', None),
                  (f'v_cvt_pk_bf16_f32 v{E+2*k}, v{g_}, v{g_+1}', None), (f'v_cvt_pk_bf16_f32 v{E+2*k+1}, v{g_+2}, v{g_+3}', None)]
        l += [(f'v_permlane16_swap_b32 v{E}, v{E+2}', None), (f'v_permlane16_swap_b32 v{E+1}, v{E+3}', None),
              (f'buffer_store_dwordx2 {vr(E+4,2)}, v231, s[16:19], s{48+P} offen offset:512 sc1', None),
              (f'buffer_store_dwordx4 {vr(E,4)}, v230, s[16:19], s{48+P} offen sc1', None)]
        return l
    for P in range(3):
        s_ = 8*KM + PS*(P+1) + 1
        for k, (l, tg) in enumerate(epi(P)): at(ev, s_ + k // 3, L(l, tg))
    if EPI3 == 0: at(pre, N1, lambda: [a(l) for l, _ in epi(3)])
    else:
        for k, (l, tg) in enumerate(epi(3)): at(ev, N1 + k // EPI3, L(l, tg))
    assert H2A * max(EPI3, 1) >= 32 or EPI3 == 0
    misc = ['v_lshrrev_b32 v232, 4, v1', 'v_and_b32 v233, 15, v1', 'v_mul_u32_u24 v234, 1280, v233', 'v_lshl_add_u32 v235, v232, 5, v234', 'v_lshl_add_u32 v234, v232, 4, v234',
            'v_mul_u32_u24 v232, 80, v232', 's_mul_i32 s63, s15, 320', f's_add_u32 s63, s63, {MODB + 3*2560}', 'v_add_u32 v236, s63, v232',
            'v_and_b32 v237, 7, v1', 'v_lshlrev_b32 v237, 8, v237', 'v_bfe_u32 v238, v1, 3, 1', 'v_add3_u32 v237, v237, v238, s60',
            'v_mul_u32_u24 v237, 1280, v237', 'v_lshrrev_b32 v232, 1, v232', 's_mul_i32 s63, s15, 160', 'v_add3_u32 v237, v237, v232, s63',
            's_mul_i32 s63, s3, 5120', 'v_add_u32 v238, s63, v2', 'v_add_u32 v239, 40960, v238', 's_mul_i32 s63, s3, 20480', 'v_add_u32 v240, s63, v2']
    for k, l in enumerate(misc): at(ev, N1 + JS + k // 4, L(l))
    at(pre, N1 + 2*JS, L('s_barrier'))
    def pw(i, t): return f'ds_write_b128 v{238 + (i >> 1)}, {vr(ACC2+20*(i&1)+4*t,4)} offset:{(i&1)*20480 + 1024*t}'
    def valid(i):
        def f():
            r = ACC2 + 20*(i&1) + 16
            a(f'v_cmp_u_f32 vcc, v{r}, v{r}')
            a('s_cmp_lg_u64 vcc, 0')
            a(f's_cbranch_scc1 Lredo{i}')
            a(f'Lok{i}:')
        return f
    for i in range(3):
        at(pre, endof[i] + 2, valid(i))
        for t in range(5): at(ev, endof[i] + 2 + t // 3, L(pw(i, t)))
    xav = endof[1] + 3
    item(xav, NSTEP - 8, L(f'buffer_load_dwordx4 {vr(XR,4)}, v235, s[16:19], s61 offen sc1', 'xg'))
    item(xav, NSTEP - 8, L(f'buffer_load_dwordx4 {vr(XR+4,4)}, v235, s[16:19], s61 offen offset:16 sc1', 'xg'))
    item(xav, NSTEP - 8, L(f'buffer_load_dwordx2 {vr(XR+8,2)}, v234, s[16:19], s62 offen offset:1024 sc1', 'xg'))
    for q in range(5): at(ev, NSTEP - 6 + q, L(f'ds_read_b128 {vr(GB+4*q,4)}, v236 offset:{16*q}'))
    def g2mfma(i, j, t):
        c = vr(ACC2 + 20*(i&1) + 4*t, 4); k, r = quad(5*j + t)
        a(f'{M16} {c}, {vr(r,4,k)}, {vr(HF[i]+4*j,4)}, {"0" if j==0 else c}')
    for s in range(8): read(s)
    lastv = -99; m = 0
    def pump(s, force=False):
        nonlocal lastv
        cand = [it for it in items if it[0] <= s and (not force or it[1] <= s)]
        if not cand: return False
        it = min(cand, key=lambda x: (x[1], x[2])); items.remove(it); it[3](); lastv = m
        return True
    for s, (kind, x, y) in enumerate(steps):
        while pump(s, True): pass
        for f in pre.get(s, []): f()
        if kind == 'g1' and s % 20 == 0 and s: st.stamp('g1')
        if s == N1: st.stamp(); st.stamp('g2'); jitter(a)
        if kind == 'g2' and (s - N1) % 8 == 0 and s > N1: st.stamp('g2')
        q = list(ev.get(s, []))
        nm = 3 if kind == 'g1' else 5
        if kind == 'g1': a.waitl(f'r{s}')
        else:
            tags = [f'h{x}_{y}'] + ([f'b2_{5*y+t}' for t in range(5)] if x == 0 else [])
            a.waitvm(max(tags, key=lambda t_: max(i for i, u in enumerate(a.vmq) if u == t_) if t_ in a.vmq else -1))
        for t in range(nm):
            if kind == 'g1':
                acc = vr(ACC + 12*y + 4*t, 4)
                a(f'{M16} {acc}, {ar(12*x+4*t,4)}, {vr(FR+4*(s%16),4)}, {"0" if x==0 else acc}')
                if t == 0 and s + 8 < N1: read(s + 8)
            else: g2mfma(x, y, t)
            m += 1
            n = -(-len(q) // (nm - t))
            nv = len(a.vmq)
            for _ in range(n): q.pop(0)()
            if len(a.vmq) > nv: lastv = m
            if m - lastv >= (RATE if s < N1 - R2S else RATE2): pump(s)
    assert not items
    st.stamp('g2')
    U = ACC2
    src = [XR, XR+1, XR+2, XR+3, XR+8, XR+4, XR+5, XR+6, XR+7, XR+9]
    a.waitvm('xg')
    for i in range(4):
        a(f'v_lshlrev_b32 v{U+2*i}, 16, v{src[i]}')
        a(f'v_and_b32 v{U+2*i+1}, s13, v{src[i]}')
    valid(3)()
    for t in range(5): a(pw(3, t))
    for i in range(4, 10):
        a(f'v_lshlrev_b32 v{U+2*i}, 16, v{src[i]}')
        a(f'v_and_b32 v{U+2*i+1}, s13, v{src[i]}')
    a('s_waitcnt lgkmcnt(0)')
    a('s_barrier')
    st.stamp('g2')
    RD = 40
    for q in range(20):
        a(f'ds_read_b128 {vr(RD+4*q,4)}, v240 offset:{1024*q}', f'rd{q//5}')
    a.waitl('rd1')
    for k in range(0, 20, 2): a(f'v_pk_add_f32 {vr(RD+k,2)}, {vr(RD+k,2)}, {vr(RD+20+k,2)}')
    a.waitl('rd3')
    for k in range(0, 20, 2): a(f'v_pk_add_f32 {vr(RD+40+k,2)}, {vr(RD+40+k,2)}, {vr(RD+60+k,2)}')
    for k in range(0, 20, 2): a(f'v_pk_add_f32 {vr(RD+k,2)}, {vr(RD+k,2)}, {vr(RD+40+k,2)}')
    for k in range(0, 20, 2): a(f'v_pk_fma_f32 {vr(U+k,2)}, {vr(RD+k,2)}, {vr(GB+k,2)}, {vr(U+k,2)}')
    for i in range(10): a(f'v_cvt_pk_bf16_f32 v{XR+i}, v{U+2*i}, v{U+2*i+1}')
    a(f'buffer_store_dwordx4 {vr(XR,4)}, v237, s[24:27], 0 offen')
    a(f'buffer_store_dwordx4 {vr(XR+4,4)}, v237, s[24:27], 0 offen offset:16')
    a(f'buffer_store_dwordx2 {vr(XR+8,2)}, v237, s[24:27], 0 offen offset:32')
    st.stamp('g2')
    st.end()
    a('Lm_end:')
    a('s_endpgm')
    for i in range(4):
        a(f'Lredo{i}:')
        if INSTR: a(f's_add_u32 s95, s95, {1 << (8*i)}')
        poll(a, f'pr{i}', [hl(i, j) for j in range(12)], range(HF[i], HF[i]+48), 250)
        for j in range(12):
            for t in range(5): g2mfma(i, j, t)
        a('s_nop 15')
        a(f's_branch Lok{i}')
    return dict(name='adaLN_cond__spectral_gfnet__glu_gated_reglu__prompt_kernel', code=a.finalize(), grid=256, block=256, lds=163840, vgpr=256, agpr=256)

E_ = lambda n, d: eval(os.environ.get(n, str(d)))
BGK1 = E_('BGK1', 10); BGW = E_('BGW', 16); BGK2 = E_('BGK2', 4); BGK3 = E_('BGK3', 4); BGW2 = E_('BGW2', 14); MBK2 = E_('MBK2', 0)
XW_EARLY = E_('XW_EARLY', 2); NONCE_AT = E_('NONCE_AT', 2); MAP2 = E_('MAP2', 8); HD = E_('HD', 4); KT = E_('KT', 8); PF1 = E_('PF1', 2)
NPRE = E_('NPRE', 12); F3S = E_('F3S', 4); F3AT = E_('F3AT', 16); VIS = E_('VIS', [1, 4, 5, 6, 8]); LAT = E_('LAT', 20); HFD = E_('HFD', 60); HFF = E_('HFF', 80); FHAT = E_('FHAT', 124)
HVIS = E_('HVIS', 28); H1A = E_('H1A', 0); H2A = E_('H2A', 8); H3A = E_('H3A', 20); EPI3 = E_('EPI3', 5); JS = E_('JS', 8); RATE = E_('RATE', 4); RATE2 = E_('RATE2', 2); R2S = E_('R2S', 0); PF2 = E_('PF2', 1)

def emit(kernels, path):
    hdr = open('adaLN_cond__spectral_gfnet__glu_gated_reglu__prompt.s.ref').read().split('\n')
    s = '\n'.join(l for l in hdr if l.startswith(';') and '@launch' not in l and 'Override' not in l and 'grid=ceil' not in l) + '\n'
    for k in kernels:
        s += f"; @launch {'kernel=' + k['name'] + ' ' if len(kernels) > 1 else ''}grid=({k['grid']},1,1) block=({k['block']},1,1) lds={k['lds']}\n"
    s += '.amdgcn_target "amdgcn-amd-amdhsa--gfx950"\n.text\n'
    uniq = []
    for k in kernels:
        if k['name'] not in [u['name'] for u in uniq]: uniq.append(k)
    for k in uniq:
        s += f".globl {k['name']}\n.p2align 8\n.type {k['name']},@function\n{k['name']}:\n{k['code']}"
    s += 'Lcode_end:\n'
    s += '.section .rodata,"a"\n'
    for k in uniq:
        acc = (k['vgpr'] + 3) // 4 * 4
        nfv = acc + k['agpr'] if k['agpr'] else k['vgpr']
        s += f""".p2align 6
.amdhsa_kernel {k['name']}
  .amdhsa_next_free_vgpr {nfv}
  .amdhsa_next_free_sgpr {102 if INSTR or JIT else 64}
  .amdhsa_accum_offset {acc}
  .amdhsa_group_segment_fixed_size 0
  .amdhsa_kernarg_size 96
  .amdhsa_user_sgpr_count 2
  .amdhsa_user_sgpr_kernarg_segment_ptr 1
  .amdhsa_system_sgpr_workgroup_id_x 1
.end_amdhsa_kernel
"""
    open(path, 'w').write(s)

if __name__ == '__main__':
    out = sys.argv[1] if len(sys.argv) > 1 else 'v12.s'
    emit([mega()], out)
```
